```python
import torch

def _softmax(x, axis=-1):
    return torch.softmax(x, dim=axis)

def _gelu(x):
    return torch.nn.functional.gelu(x, approximate='tanh')

def _silu(x):
    return torch.nn.functional.silu(x)

def _sigmoid(x):
    return torch.sigmoid(x)

def _layernorm(x, axis=-1, eps=1e-05):
    m = x.mean(dim=axis, keepdim=True)
    v = x.var(dim=axis, keepdim=True, unbiased=False)
    return (x - m) / torch.sqrt(v + eps)

def _scatter_add(tgt, idx, src, axis=0):
    return tgt.clone().index_add_(axis, idx, src)

def _segment_sum(src, seg, n):
    out = torch.zeros((n,) + src.shape[1:], dtype=src.dtype)
    return out.index_add_(0, seg, src)

def _pad(x, pw):
    flat = tuple((v for pair in reversed(pw) for v in pair))
    return torch.nn.functional.pad(x, flat)
kernel_name = 'standalone__autoregressive_conv_wavernn__speech'

def setup_inputs():

    _w = lambda a: (lambda t: t.to(torch.bfloat16) if t.is_floating_point() else t)(torch.as_tensor(a))
    B, T, D, K = (2, 4000, 256, 5)
    return {'x': _w((lambda *s: torch.randn(*s, dtype=torch.bfloat16) * 0.1)(B, T, D)), 'w': _w((lambda *s: torch.randn(*s, dtype=torch.bfloat16) * 0.1)(K, D, 2 * D))}

def reference(x, w):
    B, T, D = x.shape
    K = w.shape[0]
    dil = 2
    pad = (K - 1) * dil
    xp = _pad(x, ((0, 0), (pad, 0), (0, 0)))
    h = torch.einsum('btd,de->bte', xp[:, 0:T, :], w[0])
    for i in range(1, K):
        h = h + torch.einsum('btd,de->bte', xp[:, i * dil:i * dil + T, :], w[i])
    f, g = (h[..., :D].clone(), h[..., D:].clone())
    return torch.tanh(f) * _sigmoid(g)
```

```python
import sys

NAME = "standalone__autoregressive_conv_wavernn__speech"
DIAG = "--diag" in sys.argv

XBLK = 1040
XSLOT = 33 * XBLK
WBASE = 2 * XSLOT
WSLOT = 20480
LDS_BYTES = WBASE + 4 * WSLOT

out = []
def e(s): out.append("    " + s)
def lab(s): out.append(s + ":")
def c(s): out.append("    ; " + s)

header = f"""; Kernarg layout for this problem (40 bytes, ptrs only, base s[0:1]):
; @launch grid=(256,1,1) block=(512,1,1) lds={LDS_BYTES}
.amdgcn_target "amdgcn-amd-amdhsa--gfx950"
.text
.globl {NAME}_kernel
.p2align 8
.type {NAME}_kernel,@function
{NAME}_kernel:
"""

SX, SW, SO = 12, 16, 20
S_T0, S_E0B, S_WAVE, S_BATCH = 24, 25, 26, 27
S_TMP = 28
S_IT = 36
S_DX, S_DW = 37, 38
S_C1, S_C2, S_MASK = 39, 40, 41

def stamp(idx):
    if DIAG:
        e(f"s_memtime s[{60+2*idx}:{61+2*idx}]")

e("s_cmp_ge_u32 s2, 256")
e("s_cbranch_scc1 L_end")
if DIAG:
    e("s_memrealtime s[56:57]")
stamp(0)
e("s_load_dwordx4 s[4:7], s[0:1], 0")
e("s_load_dwordx4 s[8:11], s[0:1], 16")
if DIAG:
    e("s_load_dwordx2 s[58:59], s[0:1], 32")
e("v_lshrrev_b32 v1, 6, v0")
e("v_and_b32 v0, 63, v0")
e(f"v_readfirstlane_b32 s{S_WAVE}, v1")
e(f"s_and_b32 s{S_TMP}, s2, 7")
e(f"s_lshr_b32 s{S_TMP+1}, s2, 3")
e(f"s_lshr_b32 s{S_TMP+2}, s{S_TMP+1}, 3")
e(f"s_lshl_b32 s{S_TMP}, s{S_TMP}, 2")
e(f"s_add_u32 s{S_TMP}, s{S_TMP}, s{S_TMP+2}")
e(f"s_and_b32 s{S_E0B}, s{S_TMP+1}, 7")
e(f"s_lshl_b32 s{S_E0B}, s{S_E0B}, 6")
e(f"s_lshr_b32 s{S_BATCH}, s{S_TMP}, 4")
e(f"s_and_b32 s{S_T0}, s{S_TMP}, 15")
e(f"s_mul_i32 s{S_T0}, s{S_T0}, 250")
e(f"s_mul_i32 s{S_BATCH}, s{S_BATCH}, 2048000")
e(f"s_cmp_ge_u32 s{S_WAVE}, 4")
e("s_cbranch_scc1 L_consumer")

VX0, VX1, VXE, VW = 2, 3, 4, 5
c("loader: per-lane global offsets")
e("v_lshrrev_b32 v6, 3, v0")
e("v_and_b32 v7, 7, v0")
e(f"s_lshl_b32 s{S_TMP}, s{S_WAVE}, 3")
e(f"s_add_u32 s{S_TMP+1}, s{S_TMP}, s{S_T0}")
e(f"s_add_u32 s{S_TMP+1}, s{S_TMP+1}, 24")
e(f"v_add_u32 v8, s{S_TMP+1}, v6")
e("v_lshlrev_b32 v8, 9, v8")
e(f"v_lshl_add_u32 v{VX1}, v7, 4, v8")
e(f"v_subrev_u32 v{VX0}, 16384, v{VX1}")
e(f"v_and_b32 v{VX0}, 0x80ffffff, v{VX0}")
e(f"s_lshl_b32 s{S_TMP+2}, s{S_WAVE}, 1")
e(f"s_add_u32 s{S_TMP+2}, s{S_TMP+2}, s{S_T0}")
e(f"s_add_u32 s{S_TMP+2}, s{S_TMP+2}, 248")
e("v_lshrrev_b32 v8, 5, v0")
e(f"v_add_u32 v8, s{S_TMP+2}, v8")
e("v_lshlrev_b32 v8, 9, v8")
e("v_and_b32 v9, 31, v0")
e(f"v_lshl_add_u32 v{VXE}, v9, 2, v8")
e("v_lshrrev_b32 v8, 1, v7")
e("v_bfe_u32 v9, v6, 1, 1")
e("v_xor_b32 v8, v8, v9")
e("v_lshrrev_b32 v9, 1, v8")
e("v_lshlrev_b32 v9, 9, v9")
e("v_and_b32 v8, 1, v8")
e("v_lshl_add_u32 v9, v8, 5, v9")
e("v_and_b32 v8, 1, v7")
e("v_lshl_add_u32 v9, v8, 4, v9")
e(f"v_add_u32 v8, s{S_TMP}, v6")
e("v_lshl_add_u32 v9, v8, 10, v9")
e(f"v_add_u32 v{VW}, s{S_E0B}, v9")
S_MX, S_MXE, S_MW = 42, 43, 44
e(f"s_mul_i32 s{S_MX}, s{S_WAVE}, {XBLK}")
e(f"s_lshl_b32 s{S_MXE}, s{S_WAVE}, 8")
e(f"s_add_u32 s{S_MXE}, s{S_MXE}, {32*XBLK}")
e(f"s_lshl_b32 s{S_MW}, s{S_WAVE}, 10")
e(f"s_add_u32 s{S_MW}, s{S_MW}, {WBASE}")
e("s_waitcnt lgkmcnt(0)")
stamp(1)
e(f"s_add_u32 s{SX}, s4, s{S_BATCH}")
e(f"s_addc_u32 s{SX+1}, s5, 0")
e(f"s_mov_b32 s{SX+2}, 2048000")
e(f"s_mov_b32 s{SX+3}, 0x20000")
e(f"s_mov_b32 s{SW}, s6")
e(f"s_mov_b32 s{SW+1}, s7")
e(f"s_mov_b32 s{SW+2}, 1310720")
e(f"s_mov_b32 s{SW+3}, 0x20000")

S_OFF = S_TMP + 4
def load_x(cb):
    slot = (cb & 1) * XSLOT
    for n in range(8):
        e(f"s_add_u32 m0, s{S_MX}, {slot + n*4*XBLK}")
        if n == 0:
            e(f"s_mov_b32 s{S_OFF}, {cb*128}")
            e(f"buffer_load_dwordx4 v{VX0}, s[{SX}:{SX+3}], s{S_OFF} offen lds")
        else:
            e(f"s_mov_b32 s{S_OFF}, {cb*128 + (n-1)*16384}")
            e(f"buffer_load_dwordx4 v{VX1}, s[{SX}:{SX+3}], s{S_OFF} offen lds")
    e(f"s_add_u32 m0, s{S_MXE}, {slot}")
    e(f"s_mov_b32 s{S_OFF}, {cb*128}")
    e(f"buffer_load_dword v{VXE}, s[{SX}:{SX+3}], s{S_OFF} offen lds")
def load_w(ph):
    slot = (ph & 3) * WSLOT
    for tap in range(5):
        e(f"s_add_u32 m0, s{S_MW}, {slot + tap*4096}")
        e(f"s_mov_b32 s{S_OFF}, {tap*262144 + ph*32768}")
        e(f"buffer_load_dwordx4 v{VW}, s[{SW}:{SW+3}], s{S_OFF} offen lds")
def bar(n):
    e(f"s_waitcnt vmcnt({n})")
    e("s_barrier")

load_x(0); load_w(0); load_w(1); load_x(1); load_w(2); load_w(3)
stamp(2)
bar(24)
stamp(3)
bar(19)
load_w(4)
bar(10)
load_x(2); load_w(5)
bar(19)
load_w(6)
bar(10)
load_x(3); load_w(7)
bar(19)
bar(5)
bar(0)
stamp(4)
if DIAG:
    e("s_branch L_diag")
e("s_endpgm")

lab("L_consumer")
VXB, VWB, VO, VO2 = 8, 9, 10, 11
XA, XB_, WA, WB_ = 16, 48, 80, 100
ACC = 128
XSET = [XA, XB_]
WSET = [WA, WB_]
S_WM, S_WN = S_TMP, S_TMP + 1
e(f"s_sub_u32 s{S_WAVE}, s{S_WAVE}, 4")
e(f"s_lshr_b32 s{S_WM}, s{S_WAVE}, 1")
e(f"s_and_b32 s{S_WN}, s{S_WAVE}, 1")
e("v_and_b32 v2, 31, v0")
e("v_lshrrev_b32 v3, 5, v0")
e("v_lshrrev_b32 v4, 1, v2")
e("v_and_b32 v5, 1, v2")
e(f"s_lshl_b32 s{S_TMP+2}, s{S_WM}, 4")
e(f"v_add_u32 v6, s{S_TMP+2}, v4")
e(f"v_mul_u32_u24 v6, {XBLK}, v6")
e("v_lshl_add_u32 v6, v5, 7, v6")
e(f"v_lshl_add_u32 v{VXB}, v3, 4, v6")
e("v_bfe_u32 v6, v0, 2, 2")
e("v_lshl_add_u32 v7, v3, 3, v6")
e("v_lshlrev_b32 v7, 7, v7")
e("v_bfe_u32 v12, v0, 4, 1")
e("v_lshlrev_b32 v12, 1, v12")
e(f"v_add_u32 v12, s{S_WN}, v12")
e("v_lshrrev_b32 v13, 1, v6")
e("v_xor_b32 v12, v12, v13")
e("v_lshl_add_u32 v7, v12, 5, v7")
e("v_and_b32 v12, 1, v0")
e("v_lshl_add_u32 v7, v12, 4, v7")
e("v_bfe_u32 v12, v0, 1, 1")
e("v_lshl_add_u32 v7, v12, 3, v7")
e(f"v_add_u32 v{VWB}, {WBASE}, v7")
e(f"s_lshl_b32 s{S_TMP+2}, s{S_WM}, 7")
e(f"s_add_u32 s{S_TMP+2}, s{S_TMP+2}, s{S_T0}")
e("v_lshl_add_u32 v6, v4, 3, v5")
e(f"v_add_u32 v6, s{S_TMP+2}, v6")
e("v_lshlrev_b32 v6, 9, v6")
e("v_lshl_add_u32 v6, v3, 4, v6")
e(f"s_lshl_b32 s{S_TMP+3}, s{S_WN}, 5")
e(f"s_add_u32 s{S_TMP+3}, s{S_TMP+3}, s{S_E0B}")
e(f"v_add_u32 v{VO}, s{S_TMP+3}, v6")
e(f"s_lshl_b32 s{S_TMP+2}, s{S_WM}, 4")
e(f"v_add_u32 v6, s{S_TMP+2}, v4")
e("v_cmp_eq_u32 vcc, 31, v6")
e("v_mov_b32 v7, 0x80000000")
e("s_nop 1")
e(f"v_cndmask_b32 v{VO2}, v{VO}, v7, vcc")
for r in range(64):
    e(f"v_mov_b32 v{ACC+r}, 0")
e(f"s_mov_b32 s{S_DX}, {XSLOT}")
e(f"s_mov_b32 s{S_DW}, {2*WSLOT}")
e(f"s_mov_b32 s{S_C1}, 0xc038aa3b")
e(f"s_mov_b32 s{S_C2}, 0xbfb8aa3b")
e(f"s_mov_b32 s{S_MASK}, 0x7fffffff")
e(f"s_mov_b32 s{S_IT}, 0")
e("s_waitcnt lgkmcnt(0)")
stamp(1)
e(f"s_add_u32 s{SO}, s8, s{S_BATCH}")
e(f"s_addc_u32 s{SO+1}, s9, 0")
e(f"s_mov_b32 s{SO+2}, 2048000")
e(f"s_mov_b32 s{SO+3}, 0x20000")

def reads(setidx, ks, wslot, wks):
    X = XSET[setidx]; W = WSET[setidx]
    def xr(f):
        return f"ds_read_b128 v[{X+4*f}:{X+4*f+3}], v{VXB} offset:{(f>>2)*XBLK + (f&3)*256 + ks*32}"
    def wr(t, u):
        return f"ds_read_b64_tr_b16 v[{W+4*t+2*u}:{W+4*t+2*u+1}], v{VWB} offset:{wslot*WSLOT + t*4096 + wks*2048 + u*512}"
    l = [wr(0,0), wr(0,1), xr(0), xr(1), xr(2), xr(3)]
    for t in range(1,5):
        l += [wr(t,0), wr(t,1), xr(3+t)]
    return l

def mfmas(setidx):
    X = XSET[setidx]; W = WSET[setidx]
    l = []
    for t in range(5):
        for f in range(4):
            a = ACC + 16*f
            l.append(f"v_mfma_f32_32x32x16_bf16 v[{a}:{a+15}], v[{W+4*t}:{W+4*t+3}], v[{X+4*(f+t)}:{X+4*(f+t)+3}], v[{a}:{a+15}]")
    return l

def step(cur, rd, pre=None):
    m = mfmas(cur)
    sched = [2,1,2,1,2,1,2,1,2,1,2,1] + [0]*8
    k = 0
    for g in range(20):
        e(m[g])
        if g == 0 and pre:
            for p in pre: e(p)
        for _ in range(sched[g]):
            e(rd[k]); k += 1
    assert k == 18

stamp(2)
e("s_barrier")
stamp(3)
for r in reads(0, 0, 0, 0): e(r)
e("s_waitcnt lgkmcnt(0)")
out.append(".p2align 6")
lab("L_loop")
step(0, reads(1, 1, 0, 1))
e("s_waitcnt lgkmcnt(0)")
e("s_barrier")
step(1, reads(0, 2, 1, 0))
e("s_waitcnt lgkmcnt(0)")
step(0, reads(1, 3, 1, 1))
e("s_waitcnt lgkmcnt(0)")
e("s_barrier")
step(1, reads(0, 0, 0, 0), pre=[f"v_add_u32 v{VXB}, s{S_DX}, v{VXB}", f"v_add_u32 v{VWB}, s{S_DW}, v{VWB}",
                                f"s_sub_u32 s{S_DX}, 0, s{S_DX}", f"s_sub_u32 s{S_DW}, 0, s{S_DW}",
                                f"s_add_u32 s{S_IT}, s{S_IT}, 1"])
e("s_waitcnt lgkmcnt(0)")
e(f"s_cmp_lt_u32 s{S_IT}, 4")
e("s_cbranch_scc1 L_loop")
stamp(4)
e("s_nop 15")
T = 16
for f in range(4):
    a = ACC + 16*f
    P = T + 40 + 4*f
    for r in range(8):
        e(f"v_mul_f32 v{T+r}, s{S_C1}, abs(v{a+r})")
    for r in range(8):
        e(f"v_mul_f32 v{T+8+r}, s{S_C2}, v{a+8+r}")
    for r in range(8):
        e(f"v_exp_f32 v{T+r}, v{T+r}")
    for r in range(8):
        e(f"v_exp_f32 v{T+8+r}, v{T+8+r}")
    for r in range(8):
        e(f"v_sub_f32 v{T+16+r}, 1.0, v{T+r}")
    for r in range(8):
        e(f"v_add_f32 v{T+r}, 1.0, v{T+r}")
    for r in range(8):
        e(f"v_fma_f32 v{T+r}, v{T+r}, v{T+8+r}, v{T+r}")
    for r in range(8):
        e(f"v_rcp_f32 v{T+r}, v{T+r}")
    e("s_nop 0")
    for r in range(8):
        e(f"v_mul_f32 v{T+16+r}, v{T+16+r}, v{T+r}")
    for r in range(8):
        e(f"v_bfi_b32 v{T+16+r}, s{S_MASK}, v{T+16+r}, v{a+r}")
    for r in range(4):
        e(f"v_cvt_pk_bf16_f32 v{P+r}, v{T+16+2*r}, v{T+17+2*r}")
    e(f"buffer_store_dwordx4 v[{P}:{P+3}], v{VO if f==0 else VO2}, s[{SO}:{SO+3}], 0 offen offset:{f*1024}")
stamp(5)
if DIAG:
    e("s_waitcnt vmcnt(0)")
    stamp(6)
    lab("L_diag")
    e("s_waitcnt lgkmcnt(0)")
    e("s_memrealtime s[74:75]")
    e("s_getreg_b32 s76, hwreg(HW_REG_XCC_ID)")
    e("s_getreg_b32 s77, hwreg(HW_REG_HW_ID)")
    e("s_waitcnt lgkmcnt(0)")
    e("s_mov_b32 s80, s58")
    e("s_mov_b32 s81, s59")
    e("s_mov_b32 s82, 0x100000")
    e("s_mov_b32 s83, 0x20000")
    e("v_mov_b32 v1, 0")
    vals = ["s60","s62","s64","s66","s68","s70","s72","s56","s74","s76","s77","s61"]
    for i, s in enumerate(vals):
        e(f"v_mov_b32 v2, {s}")
        e(f"v_cmp_eq_u32 vcc, {i}, v0")
        e("s_nop 1")
        e("v_cndmask_b32 v1, v1, v2, vcc")
    e("s_lshl_b32 s79, s2, 3")
    e("s_add_u32 s79, s79, s78")
    e("s_lshl_b32 s79, s79, 6")
    e("v_lshlrev_b32 v3, 2, v0")
    e("v_cmp_gt_u32 vcc, 16, v0")
    e("s_and_saveexec_b64 s[84:85], vcc")
    e("buffer_store_dword v1, v3, s[80:83], s79 offen")
    e("s_waitcnt vmcnt(0)")
lab("L_end")
e("s_endpgm")

body = "\n".join(out)
if DIAG:
    body = body.replace(f"    v_readfirstlane_b32 s{S_WAVE}, v1\n", f"    v_readfirstlane_b32 s{S_WAVE}, v1\n    v_readfirstlane_b32 s78, v1\n    s_mov_b32 s70, 0\n    s_mov_b32 s72, 0\n", 1)

footer = f"""
.section .rodata,"a"
.p2align 6
.amdhsa_kernel {NAME}_kernel
  .amdhsa_next_free_vgpr 192
  .amdhsa_next_free_sgpr 96
  .amdhsa_accum_offset 192
  .amdhsa_group_segment_fixed_size 0
  .amdhsa_kernarg_size 40
  .amdhsa_user_sgpr_count 2
  .amdhsa_user_sgpr_kernarg_segment_ptr 1
  .amdhsa_system_sgpr_workgroup_id_x 1
.end_amdhsa_kernel
"""
sys.stdout.write(header + body + footer)
```

```python
import sys, argparse

ap = argparse.ArgumentParser()
ap.add_argument("--diag", action="store_true")
ap.add_argument("--loader", default="x0 w0 w1 x1 w2 w3 b24 b19 w4 b10 x2 w5 b19 w6 b10 x3 w7 b19 b5 b0")
ap.add_argument("--nocons", action="store_true", help="consumers exit at once (loader microbench)")
ap.add_argument("--rot", default="none", help="K-order rotation: none|mt|xcd")
ap.add_argument("--map", default="4x8", help="XCD mapping: 4x8 (4 M tiles x 8 N tiles per XCD) or 8x4")
ap.add_argument("--pf", default="", help="consumer-side L2 prefetch program")
ap.add_argument("--store", default="", help="store cache flags")
ap.add_argument("--cpf", default="", help="consumer scalar prefetch program (pW0 pX1 ...)")
A = ap.parse_args()
DIAG = A.diag

NAME = "standalone__autoregressive_conv_wavernn__speech"
XBLK = 1040
XSLOT = 33 * XBLK
WBASE = 2 * XSLOT
WSLOT = 20480
LDS_BYTES = WBASE + 4 * WSLOT

out = []
def e(s): out.append("    " + s)
def lab(s): out.append(s + ":")
def c(s): out.append("    ; " + s)

header = f"""; x (2,4000,256) bf16 @0, w (5,256,512) bf16 @8, out (2,4000,256) bf16 @16, debug @24, ws @32
; @launch grid=(256,1,1) block=(512,1,1) lds={LDS_BYTES}
.amdgcn_target "amdgcn-amd-amdhsa--gfx950"
.text
.globl {NAME}_kernel
.p2align 8
.type {NAME}_kernel,@function
{NAME}_kernel:
"""
SX, SW, SO = 12, 16, 20
S_T0, S_E0B, S_WAVE, S_BATCH = 24, 25, 26, 27
S_TMP = 28
S_IT = 36
S_DX, S_DW = 37, 38
S_C1, S_C2, S_MASK = 39, 40, 41
S_MX, S_MXE, S_MW = 42, 43, 44
S_ROTX, S_ROTW = 45, 46
S_IDX, S_XCD = 47, 48
NST = 14
ST0 = 60
def stamp(idx):
    if DIAG:
        e(f"s_memtime s[{ST0+2*idx}:{ST0+1+2*idx}]")
def rstamp(idx):
    if DIAG:
        e(f"s_memrealtime s[{88+2*idx}:{89+2*idx}]")

e("s_cmp_ge_u32 s2, 256")
e("s_cbranch_scc1 L_end")
rstamp(0)
stamp(0)
e("s_load_dwordx4 s[4:7], s[0:1], 0")
e("s_load_dwordx4 s[8:11], s[0:1], 16")
if DIAG:
    e("s_load_dwordx2 s[58:59], s[0:1], 32")
e("v_lshrrev_b32 v1, 6, v0")
e("v_and_b32 v0, 63, v0")
e(f"v_readfirstlane_b32 s{S_WAVE}, v1")
if DIAG:
    e("v_readfirstlane_b32 s57, v1")
    for i in range(1, NST): e(f"s_mov_b32 s{ST0+2*i}, 0")
    e("s_mov_b32 s90, 0"); e("s_mov_b32 s92, 0")
e(f"s_and_b32 s{S_XCD}, s2, 7")
e(f"s_lshr_b32 s{S_IDX}, s2, 3")
if A.map == "4x8":
    e(f"s_lshr_b32 s{S_TMP+2}, s{S_IDX}, 3")
    e(f"s_lshl_b32 s{S_TMP}, s{S_XCD}, 2")
    e(f"s_add_u32 s{S_TMP}, s{S_TMP}, s{S_TMP+2}")
    e(f"s_and_b32 s{S_E0B}, s{S_IDX}, 7")
else:
    e(f"s_lshr_b32 s{S_TMP+2}, s{S_IDX}, 2")
    e(f"s_lshr_b32 s{S_TMP}, s{S_XCD}, 1")
    e(f"s_lshl_b32 s{S_TMP}, s{S_TMP}, 3")
    e(f"s_add_u32 s{S_TMP}, s{S_TMP}, s{S_TMP+2}")
    e(f"s_and_b32 s{S_E0B}, s{S_XCD}, 1")
    e(f"s_lshl_b32 s{S_E0B}, s{S_E0B}, 2")
    e(f"s_and_b32 s{S_TMP+2}, s{S_IDX}, 3")
    e(f"s_add_u32 s{S_E0B}, s{S_E0B}, s{S_TMP+2}")
e(f"s_lshl_b32 s{S_E0B}, s{S_E0B}, 6")
if A.rot == "mt":
    e(f"s_and_b32 s{S_ROTX}, s{S_TMP}, 3")
elif A.rot == "xcd":
    e(f"s_and_b32 s{S_ROTX}, s{S_XCD}, 3")
else:
    e(f"s_mov_b32 s{S_ROTX}, 0")
e(f"s_lshl_b32 s{S_ROTW}, s{S_ROTX}, 16")
e(f"s_lshl_b32 s{S_ROTX}, s{S_ROTX}, 7")
e(f"s_lshr_b32 s{S_BATCH}, s{S_TMP}, 4")
e(f"s_and_b32 s{S_T0}, s{S_TMP}, 15")
e(f"s_mul_i32 s{S_T0}, s{S_T0}, 250")
e(f"s_mul_i32 s{S_BATCH}, s{S_BATCH}, 2048000")
e(f"s_cmp_ge_u32 s{S_WAVE}, 4")
e("s_cbranch_scc1 L_consumer")

VX0, VX1, VXE, VW = 2, 3, 4, 5
e("v_lshrrev_b32 v6, 3, v0")
e("v_and_b32 v7, 7, v0")
e(f"s_lshl_b32 s{S_TMP}, s{S_WAVE}, 3")
e(f"s_add_u32 s{S_TMP+1}, s{S_TMP}, s{S_T0}")
e(f"s_add_u32 s{S_TMP+1}, s{S_TMP+1}, 24")
e(f"v_add_u32 v8, s{S_TMP+1}, v6")
e("v_lshlrev_b32 v8, 9, v8")
e(f"v_lshl_add_u32 v{VX1}, v7, 4, v8")
e(f"v_subrev_u32 v{VX0}, 16384, v{VX1}")
e(f"v_and_b32 v{VX0}, 0x80ffffff, v{VX0}")
e(f"s_lshl_b32 s{S_TMP+2}, s{S_WAVE}, 1")
e(f"s_add_u32 s{S_TMP+2}, s{S_TMP+2}, s{S_T0}")
e(f"s_add_u32 s{S_TMP+2}, s{S_TMP+2}, 248")
e("v_lshrrev_b32 v8, 5, v0")
e(f"v_add_u32 v8, s{S_TMP+2}, v8")
e("v_lshlrev_b32 v8, 9, v8")
e("v_and_b32 v9, 31, v0")
e(f"v_lshl_add_u32 v{VXE}, v9, 2, v8")
e("v_lshrrev_b32 v8, 1, v7")
e("v_bfe_u32 v9, v6, 1, 1")
e("v_xor_b32 v8, v8, v9")
e("v_lshrrev_b32 v9, 1, v8")
e("v_lshlrev_b32 v9, 9, v9")
e("v_and_b32 v8, 1, v8")
e("v_lshl_add_u32 v9, v8, 5, v9")
e("v_and_b32 v8, 1, v7")
e("v_lshl_add_u32 v9, v8, 4, v9")
e(f"v_add_u32 v8, s{S_TMP}, v6")
e("v_lshl_add_u32 v9, v8, 10, v9")
e(f"v_add_u32 v{VW}, s{S_E0B}, v9")
e(f"s_mul_i32 s{S_MX}, s{S_WAVE}, {XBLK}")
e(f"s_lshl_b32 s{S_MXE}, s{S_WAVE}, 8")
e(f"s_add_u32 s{S_MXE}, s{S_MXE}, {32*XBLK}")
e(f"s_lshl_b32 s{S_MW}, s{S_WAVE}, 10")
e(f"s_add_u32 s{S_MW}, s{S_MW}, {WBASE}")
e("s_waitcnt lgkmcnt(0)")
stamp(1)
e(f"s_add_u32 s{SX}, s4, s{S_BATCH}")
e(f"s_addc_u32 s{SX+1}, s5, 0")
e(f"s_mov_b32 s{SX+2}, 2048000")
e(f"s_mov_b32 s{SX+3}, 0x20000")
e(f"s_mov_b32 s{SW}, s6")
e(f"s_mov_b32 s{SW+1}, s7")
e(f"s_mov_b32 s{SW+2}, 1310720")
e(f"s_mov_b32 s{SW+3}, 0x20000")

S_OFF = S_TMP + 4
S_CB = S_TMP + 5
S_PW, S_PX = 96, 98
S_DUMMY = 49
def pf_setup(wreg):
    e(f"s_lshl_b32 s{S_TMP+6}, s{S_IDX}, 2")
    e(f"s_add_u32 s{S_TMP+6}, s{S_TMP+6}, s{wreg}")
    e(f"s_min_u32 s{S_TMP+6}, s{S_TMP+6}, 124")
    e(f"s_mul_i32 s{S_TMP+7}, s{S_TMP+6}, 205")
    e(f"s_lshr_b32 s{S_TMP+7}, s{S_TMP+7}, 10")
    e(f"s_mul_i32 s{S_PX}, s{S_TMP+7}, 5")
    e(f"s_sub_u32 s{S_PX}, s{S_TMP+6}, s{S_PX}")
    e(f"s_lshl_b32 s{S_PX}, s{S_PX}, 18")
    e(f"s_mul_i32 s{S_TMP+7}, s{S_TMP+7}, 1305")
    e(f"s_and_b32 s{S_TMP+7}, s{S_TMP+7}, 0xffffff80")
    e(f"s_add_u32 s{S_TMP+7}, s{S_TMP+7}, s{S_PX}")
    e(f"s_add_u32 s{S_PW}, s6, s{S_TMP+7}")
    e(f"s_addc_u32 s{S_PW+1}, s7, 0")
    e(f"s_lshl_b32 s{S_TMP+6}, s{S_TMP+6}, 3")
    e(f"s_mul_i32 s{S_TMP+7}, s{S_XCD}, 1000")
    e(f"s_add_u32 s{S_TMP+6}, s{S_TMP+6}, s{S_TMP+7}")
    e(f"s_lshl_b32 s{S_TMP+6}, s{S_TMP+6}, 9")
    e(f"s_add_u32 s{S_PX}, s4, s{S_TMP+6}")
    e(f"s_addc_u32 s{S_PX+1}, s5, 0")
def pf_op(a):
    parts = a[1:].split(':')
    n = int(parts[0])
    if a[0] == 'W':
        lo, hi = (int(parts[1]), int(parts[2])) if len(parts) > 1 else (0, 11)
        for t in range(lo, hi):
            e(f"s_load_dword s{S_DUMMY}, s[{S_PW}:{S_PW+1}], {n*32768 + t*128}")
    else:
        lo, hi = (int(parts[1]), int(parts[2])) if len(parts) > 1 else (0, 8)
        for j in range(lo, hi):
            e(f"s_load_dword s{S_DUMMY}, s[{S_PX}:{S_PX+1}], {j*512 + n*128}")
if 'p' in [op[0] for op in A.loader.split()]:
    pf_setup(S_WAVE)
def load_x(cb, lo=0, hi=9):
    slot = (cb & 1) * XSLOT
    if A.rot != "none":
        e(f"s_add_u32 s{S_CB}, s{S_ROTX}, {cb*128}")
        e(f"s_and_b32 s{S_CB}, s{S_CB}, 511")
    def off(v):
        if A.rot != "none": e(f"s_add_u32 s{S_OFF}, s{S_CB}, {v}")
        else: e(f"s_mov_b32 s{S_OFF}, {cb*128 + v}")
    for n in range(lo, hi):
        if n < 8:
            e(f"s_add_u32 m0, s{S_MX}, {slot + n*4*XBLK}")
            off(0 if n == 0 else (n-1)*16384)
            e(f"buffer_load_dwordx4 v{VX0 if n == 0 else VX1}, s[{SX}:{SX+3}], s{S_OFF} offen lds")
        else:
            e(f"s_add_u32 m0, s{S_MXE}, {slot}")
            off(0)
            e(f"buffer_load_dword v{VXE}, s[{SX}:{SX+3}], s{S_OFF} offen lds")
def load_w(ph):
    slot = (ph & 3) * WSLOT
    if A.rot != "none":
        e(f"s_add_u32 s{S_CB}, s{S_ROTW}, {ph*32768}")
        e(f"s_and_b32 s{S_CB}, s{S_CB}, 262143")
    for tap in range(5):
        e(f"s_add_u32 m0, s{S_MW}, {slot + tap*4096}")
        if A.rot != "none": e(f"s_add_u32 s{S_OFF}, s{S_CB}, {tap*262144}")
        else: e(f"s_mov_b32 s{S_OFF}, {tap*262144 + ph*32768}")
        e(f"buffer_load_dwordx4 v{VW}, s[{SW}:{SW+3}], s{S_OFF} offen lds")

for op in A.loader.split():
    k, a = op[0], op[1:]
    if k == 'x':
        if ':' in a:
            cb, lo, hi = map(int, a.split(':')); load_x(cb, lo, hi)
        else: load_x(int(a))
    elif k == 'w': load_w(int(a))
    elif k == 'b':
        e(f"s_waitcnt vmcnt({int(a)})"); e("s_barrier")
    elif k == 'v': e(f"s_waitcnt vmcnt({int(a)})")
    elif k == 's': stamp(int(a))
    elif k == 'r': rstamp(int(a))
    elif k == 'p': pf_op(a)
    elif k == 'l': e(f"s_waitcnt lgkmcnt({int(a)})")
    else: raise ValueError(op)
if DIAG:
    e("s_branch L_diag")
e("s_endpgm")

lab("L_consumer")
VXB, VWB, VO, VO2 = 8, 9, 10, 11
XA, XB_, WA, WB_ = 16, 48, 80, 100
ACC = 128
XSET = [XA, XB_]
WSET = [WA, WB_]
S_WM, S_WN = S_TMP, S_TMP + 1
e(f"s_sub_u32 s{S_WAVE}, s{S_WAVE}, 4")

def prefetch_prog():
    e(f"s_lshl_b32 s{S_TMP+2}, s{S_IDX}, 2")
    e(f"s_add_u32 s{S_TMP+2}, s{S_TMP+2}, s{S_WAVE}")
    e(f"s_lshl_b32 s{S_TMP+2}, s{S_TMP+2}, 6")
    e(f"v_add_u32 v120, s{S_TMP+2}, v0")
    e("s_waitcnt lgkmcnt(0)")
    e(f"s_mov_b32 s{SW}, s6"); e(f"s_mov_b32 s{SW+1}, s7"); e(f"s_mov_b32 s{SW+2}, 1310720"); e(f"s_mov_b32 s{SW+3}, 0x20000")
    e(f"s_mov_b32 s{SX}, s4"); e(f"s_mov_b32 s{SX+1}, s5"); e(f"s_mov_b32 s{SX+2}, 4096000"); e(f"s_mov_b32 s{SX+3}, 0x20000")
    dst = 124
    for op in A.pf.split():
        if op == "W":
            for rep in range(2):
                e(f"v_add_u32 v121, {rep*8192}, v120")
                e("v_lshrrev_b32 v122, 8, v121")
                e("v_mul_u32_u24 v123, 52429, v122")
                e("v_lshrrev_b32 v123, 18, v123")
                e("v_mul_u32_u24 v125, 5, v123")
                e("v_sub_u32 v122, v122, v125")
                e("v_and_b32 v121, 255, v121")
                e("v_lshlrev_b32 v121, 7, v121")
                e("v_lshl_add_u32 v121, v123, 15, v121")
                e("v_lshl_add_u32 v121, v122, 18, v121")
                if rep == 1:
                    e("v_cmp_gt_u32 vcc, 2048, v120")
                    e("v_mov_b32 v125, 0x80000000")
                    e("s_nop 0")
                    e("v_cndmask_b32 v121, v125, v121, vcc")
                e(f"buffer_load_dword v{dst}, v121, s[{SW}:{SW+3}], 0 offen")
        elif op == "X":
            e("v_mul_u32_u24 v121, 65, v120")
            e("v_lshrrev_b32 v121, 16, v121")
            e("v_mul_u32_u24 v122, 1008, v121")
            e("v_sub_u32 v122, v120, v122")
            e(f"s_mul_i32 s{S_TMP+3}, s{S_XCD}, 1000")
            e(f"s_sub_u32 s{S_TMP+3}, s{S_TMP+3}, 8")
            e(f"v_add_u32 v122, s{S_TMP+3}, v122")
            e("v_lshlrev_b32 v122, 9, v122")
            e("v_lshl_add_u32 v122, v121, 7, v122")
            e("v_and_b32 v122, 0x80ffffff, v122")
            e("v_cmp_gt_u32 vcc, 4032, v120")
            e("v_mov_b32 v125, 0x80000000")
            e("s_nop 0")
            e("v_cndmask_b32 v122, v125, v122, vcc")
            e(f"buffer_load_dword v{dst}, v122, s[{SX}:{SX+3}], 0 offen")
        elif op[0] == 'v': e(f"s_waitcnt vmcnt({int(op[1:])})")
        elif op[0] == 's': stamp(int(op[1:]))
if A.pf:
    prefetch_prog()
if A.cpf:
    e("s_waitcnt lgkmcnt(0)")
    pf_setup(S_WAVE)
    for op in A.cpf.split():
        if op[0] == 'p': pf_op(op[1:])
        elif op[0] == 's': stamp(int(op[1:]))
        elif op[0] == 'l': e(f"s_waitcnt lgkmcnt({int(op[1:])})")
if A.nocons:
    if DIAG: e("s_branch L_diag")
    e("s_endpgm")
e(f"s_lshr_b32 s{S_WM}, s{S_WAVE}, 1")
e(f"s_and_b32 s{S_WN}, s{S_WAVE}, 1")
e("v_and_b32 v2, 31, v0")
e("v_lshrrev_b32 v3, 5, v0")
e("v_lshrrev_b32 v4, 1, v2")
e("v_and_b32 v5, 1, v2")
e(f"s_lshl_b32 s{S_TMP+2}, s{S_WM}, 4")
e(f"v_add_u32 v6, s{S_TMP+2}, v4")
e(f"v_mul_u32_u24 v6, {XBLK}, v6")
e("v_lshl_add_u32 v6, v5, 7, v6")
e(f"v_lshl_add_u32 v{VXB}, v3, 4, v6")
e("v_bfe_u32 v6, v0, 2, 2")
e("v_lshl_add_u32 v7, v3, 3, v6")
e("v_lshlrev_b32 v7, 7, v7")
e("v_bfe_u32 v12, v0, 4, 1")
e("v_lshlrev_b32 v12, 1, v12")
e(f"v_add_u32 v12, s{S_WN}, v12")
e("v_lshrrev_b32 v13, 1, v6")
e("v_xor_b32 v12, v12, v13")
e("v_lshl_add_u32 v7, v12, 5, v7")
e("v_and_b32 v12, 1, v0")
e("v_lshl_add_u32 v7, v12, 4, v7")
e("v_bfe_u32 v12, v0, 1, 1")
e("v_lshl_add_u32 v7, v12, 3, v7")
e(f"v_add_u32 v{VWB}, {WBASE}, v7")
e(f"s_lshl_b32 s{S_TMP+2}, s{S_WM}, 7")
e(f"s_add_u32 s{S_TMP+2}, s{S_TMP+2}, s{S_T0}")
e("v_lshl_add_u32 v6, v4, 3, v5")
e(f"v_add_u32 v6, s{S_TMP+2}, v6")
e("v_lshlrev_b32 v6, 9, v6")
e("v_lshl_add_u32 v6, v3, 4, v6")
e(f"s_lshl_b32 s{S_TMP+3}, s{S_WN}, 5")
e(f"s_add_u32 s{S_TMP+3}, s{S_TMP+3}, s{S_E0B}")
e(f"v_add_u32 v{VO}, s{S_TMP+3}, v6")
e(f"s_lshl_b32 s{S_TMP+2}, s{S_WM}, 4")
e(f"v_add_u32 v6, s{S_TMP+2}, v4")
e("v_cmp_eq_u32 vcc, 31, v6")
e("v_mov_b32 v7, 0x80000000")
e("s_nop 1")
e(f"v_cndmask_b32 v{VO2}, v{VO}, v7, vcc")
for r in range(64):
    e(f"v_mov_b32 v{ACC+r}, 0")
e(f"s_mov_b32 s{S_DX}, {XSLOT}")
e(f"s_mov_b32 s{S_DW}, {2*WSLOT}")
e(f"s_mov_b32 s{S_C1}, 0xc038aa3b")
e(f"s_mov_b32 s{S_C2}, 0xbfb8aa3b")
e(f"s_mov_b32 s{S_MASK}, 0x7fffffff")
e(f"s_mov_b32 s{S_IT}, 0")
e("s_waitcnt lgkmcnt(0)")
stamp(1)
e(f"s_add_u32 s{SO}, s8, s{S_BATCH}")
e(f"s_addc_u32 s{SO+1}, s9, 0")
e(f"s_mov_b32 s{SO+2}, 2048000")
e(f"s_mov_b32 s{SO+3}, 0x20000")

def reads(setidx, ks, wslot, wks):
    X = XSET[setidx]; W = WSET[setidx]
    def xr(f):
        return f"ds_read_b128 v[{X+4*f}:{X+4*f+3}], v{VXB} offset:{(f>>2)*XBLK + (f&3)*256 + ks*32}"
    def wr(t, u):
        return f"ds_read_b64_tr_b16 v[{W+4*t+2*u}:{W+4*t+2*u+1}], v{VWB} offset:{wslot*WSLOT + t*4096 + wks*2048 + u*512}"
    l = [wr(0,0), wr(0,1), xr(0), xr(1), xr(2), xr(3)]
    for t in range(1,5):
        l += [wr(t,0), wr(t,1), xr(3+t)]
    return l
def mfmas(setidx):
    X = XSET[setidx]; W = WSET[setidx]
    l = []
    for t in range(5):
        for f in range(4):
            a = ACC + 16*f
            l.append(f"v_mfma_f32_32x32x16_bf16 v[{a}:{a+15}], v[{W+4*t}:{W+4*t+3}], v[{X+4*(f+t)}:{X+4*(f+t)+3}], v[{a}:{a+15}]")
    return l
def step(cur, rd, pre=None):
    m = mfmas(cur)
    sched = [2,1,2,1,2,1,2,1,2,1,2,1] + [0]*8
    k = 0
    for g in range(20):
        e(m[g])
        if g == 0 and pre:
            for p in pre: e(p)
        for _ in range(sched[g]):
            e(rd[k]); k += 1
    assert k == 18

stamp(2)
e("s_barrier")
stamp(3)
rstamp(1)
for r in reads(0, 0, 0, 0): e(r)
e("s_waitcnt lgkmcnt(0)")
out.append(".p2align 6")
lab("L_loop")
step(0, reads(1, 1, 0, 1))
e("s_waitcnt lgkmcnt(0)")
e("s_barrier")
step(1, reads(0, 2, 1, 0))
e("s_waitcnt lgkmcnt(0)")
step(0, reads(1, 3, 1, 1))
e("s_waitcnt lgkmcnt(0)")
e("s_barrier")
step(1, reads(0, 0, 0, 0), pre=[f"v_add_u32 v{VXB}, s{S_DX}, v{VXB}", f"v_add_u32 v{VWB}, s{S_DW}, v{VWB}",
                                f"s_sub_u32 s{S_DX}, 0, s{S_DX}", f"s_sub_u32 s{S_DW}, 0, s{S_DW}",
                                f"s_add_u32 s{S_IT}, s{S_IT}, 1"])
e("s_waitcnt lgkmcnt(0)")
if DIAG:
    for i in range(1, 4):
        e(f"s_cmp_lg_u32 s{S_IT}, {i}")
        e(f"s_cbranch_scc1 L_ns{i}")
        stamp(6+i)
        lab(f"L_ns{i}")
e(f"s_cmp_lt_u32 s{S_IT}, 4")
e("s_cbranch_scc1 L_loop")
stamp(4)
rstamp(2)
e("s_nop 15")
T = 16
for f in range(4):
    a = ACC + 16*f
    P = T + 40 + 4*f
    for r in range(8): e(f"v_mul_f32 v{T+r}, s{S_C1}, abs(v{a+r})")
    for r in range(8): e(f"v_mul_f32 v{T+8+r}, s{S_C2}, v{a+8+r}")
    for r in range(8): e(f"v_exp_f32 v{T+r}, v{T+r}")
    for r in range(8): e(f"v_exp_f32 v{T+8+r}, v{T+8+r}")
    for r in range(8): e(f"v_sub_f32 v{T+16+r}, 1.0, v{T+r}")
    for r in range(8): e(f"v_add_f32 v{T+r}, 1.0, v{T+r}")
    for r in range(8): e(f"v_fma_f32 v{T+r}, v{T+r}, v{T+8+r}, v{T+r}")
    for r in range(8): e(f"v_rcp_f32 v{T+r}, v{T+r}")
    e("s_nop 0")
    for r in range(8): e(f"v_mul_f32 v{T+16+r}, v{T+16+r}, v{T+r}")
    for r in range(8): e(f"v_bfi_b32 v{T+16+r}, s{S_MASK}, v{T+16+r}, v{a+r}")
    for r in range(4): e(f"v_cvt_pk_bf16_f32 v{P+r}, v{T+16+2*r}, v{T+17+2*r}")
    e(f"buffer_store_dwordx4 v[{P}:{P+3}], v{VO if f==0 else VO2}, s[{SO}:{SO+3}], 0 offen offset:{f*1024} {A.store}")
stamp(5)
if DIAG:
    e("s_waitcnt vmcnt(0)")
    stamp(6)
    lab("L_diag")
    e("s_waitcnt vmcnt(0) lgkmcnt(0)")
    rstamp(3)
    e("s_getreg_b32 s50, hwreg(HW_REG_XCC_ID)")
    e("s_getreg_b32 s51, hwreg(HW_REG_HW_ID)")
    e("s_waitcnt lgkmcnt(0)")
    e("s_mov_b32 s52, s58"); e("s_mov_b32 s53, s59"); e("s_mov_b32 s54, 0x100000"); e("s_mov_b32 s55, 0x20000")
    e("v_mov_b32 v1, 0")
    vals = [f"s{ST0+2*i}" for i in range(NST)] + ["s88", "s90", "s92", "s94", "s50", "s51"]
    for i, s in enumerate(vals):
        e(f"v_mov_b32 v2, {s}")
        e(f"v_cmp_eq_u32 vcc, {i}, v0")
        e("s_nop 1")
        e("v_cndmask_b32 v1, v1, v2, vcc")
    e("s_lshl_b32 s56, s2, 3")
    e("s_add_u32 s56, s56, s57")
    e("s_lshl_b32 s56, s56, 7")
    e("v_lshlrev_b32 v3, 2, v0")
    e("v_cmp_gt_u32 vcc, 32, v0")
    e("s_and_saveexec_b64 s[4:5], vcc")
    e("buffer_store_dword v1, v3, s[52:55], s56 offen")
    e("s_waitcnt vmcnt(0)")
lab("L_end")
e("s_endpgm")

footer = f"""
.section .rodata,"a"
.p2align 6
.amdhsa_kernel {NAME}_kernel
  .amdhsa_next_free_vgpr 192
  .amdhsa_next_free_sgpr 100
  .amdhsa_accum_offset 192
  .amdhsa_group_segment_fixed_size 0
  .amdhsa_kernarg_size 40
  .amdhsa_user_sgpr_count 2
  .amdhsa_user_sgpr_kernarg_segment_ptr 1
  .amdhsa_system_sgpr_workgroup_id_x 1
.end_amdhsa_kernel
"""
sys.stdout.write(header + "\n".join(out) + footer)
```

```python
import sys, argparse, re

ap = argparse.ArgumentParser()
ap.add_argument("--diag", action="store_true")
ap.add_argument("--loader", default="w x w b10 x b5 w b0 r w x b5 w b0 w x b5 r w b0 w b0")
ap.add_argument("--store", default="nt", help="store cache flags")
ap.add_argument("--order", default="a", help="main-step MFMA order")
ap.add_argument("--bar", type=int, default=40, help="MFMA index of the mid-step barrier")
ap.add_argument("--rdend", type=int, default=74, help="last MFMA gap carrying a read")
ap.add_argument("--lag", type=int, default=1)
ap.add_argument("--xflag", default="nt", help="cache flags on X DMA")
ap.add_argument("--wflag", default="", help="cache flags on W DMA")
ap.add_argument("--pk", type=int, default=1)
ap.add_argument("--quota", type=int, default=8)
ap.add_argument("--pad", type=int, default=0)
ap.add_argument("--cw", type=int, default=0, help="code warm stride (bytes per lane, 0=off)")
ap.add_argument("--epi", type=int, default=9)
ap.add_argument("--tord", default="a", help="tail group order: a (chain) | t")
ap.add_argument("--dbg", default="", help="diagnostic tail edits: s=no store/permlane in gaps, t=trans->mov, w=waits right after MFMA")
ap.add_argument("--rot", type=int, default=1)
A = ap.parse_args()
DIAG = A.diag

NAME = "standalone__autoregressive_conv_wavernn__speech"
XBLK = 1040
XSLOT = 20480
WBASE = 2 * XSLOT
WSLOT = 40960
LDS_BYTES = WBASE + 3 * WSLOT

out = []
def e(s): out.append("    " + s)
def lab(s): out.append(s + ":")

header = f"""; x (2,4000,256) bf16 @0, w (5,256,512) bf16 @8, out (2,4000,256) bf16 @16, debug @24, ws @32
; @launch grid=(256,1,1) block=(512,1,1) lds={LDS_BYTES}
.amdgcn_target "amdgcn-amd-amdhsa--gfx950"
.text
.globl {NAME}_kernel
.p2align 8
.type {NAME}_kernel,@function
{NAME}_kernel:
"""
SX, SW, SO = 12, 16, 20
NST = 16
SC0, SR0 = 60, 76
def stamp_issue():
    if DIAG:
        e("s_memtime s[50:51]"); e("s_memrealtime s[52:53]")
def stamp_commit(idx=None):
    if DIAG:
        if idx is None:
            e(f"s_movreld_b32 s{SC0}, s50"); e(f"s_movreld_b32 s{SR0}, s52"); e("s_add_u32 m0, m0, 1")
        else:
            e(f"s_mov_b32 s{SC0+idx}, s50"); e(f"s_mov_b32 s{SR0+idx}, s52")
def stamp_now(idx):
    if DIAG:
        stamp_issue(); e("s_waitcnt lgkmcnt(0)"); stamp_commit(idx)

if DIAG:
    e("s_memtime s[54:55]"); e("s_memrealtime s[56:57]")
e(f"s_load_dwordx2 s[{SW}:{SW+1}], s[0:1], 8")
e(f"s_load_dwordx2 s[{SX}:{SX+1}], s[0:1], 0")
e("v_readfirstlane_b32 s3, v0")
e("s_lshr_b32 s28, s2, 8")
e("s_cbranch_scc1 L_end0")
e("s_bitcmp1_b32 s3, 8")
e("s_cbranch_scc1 L_consumer")

sR, sT, sRX, sRW, sB, sMX, sMXS, sMW, sK, sO, sC = 20, 21, 22, 23, 24, 25, 26, 27, 28, 29, 30
RET, PC = 32, 34
VX, VW, VXT = 3, 5, 7
if A.cw:
    e(f"s_getpc_b64 s[{PC}:{PC+1}]")
    lab("L_pc")
    e(f"v_mul_u32_u24 v8, {A.cw}, v0")
    e(f"global_load_dword v9, v8, s[{PC}:{PC+1}]")
VW2 = 10
e("v_lshrrev_b32 v2, 3, v0")
e("v_lshrrev_b32 v4, 4, v0")
e(f"s_and_b32 s{sR}, s2, 3")
e(f"s_lshr_b32 s{sT}, s2, 5")
e("v_bfi_b32 v4, 6, v2, v4")
e(f"s_lshl3_add_u32 s{sT}, s{sR}, s{sT}")
e("v_xor_b32 v4, v4, v0")
e(f"s_mul_i32 s{sT}, s{sT}, 64000")
e("v_bfi_b32 v4, 14, v4, v0")
e(f"s_addk_i32 s{sT}, 0xf000")
e("v_and_b32 v6, 7, v4")
if A.rot == 1:
    e(f"s_lshl_b32 s{sRX}, s{sR}, 7")
    e(f"s_lshl_b32 s{sRW}, s{sR}, 16")
elif A.rot == 2:
    e(f"s_bfe_u32 s{sR}, s2, 0x20005")
    e(f"s_lshl_b32 s{sRX}, s{sR}, 7")
    e(f"s_lshl_b32 s{sRW}, s{sR}, 16")
else:
    e(f"s_mov_b32 s{sRX}, 0")
    e(f"s_mov_b32 s{sRW}, 0")
e("v_lshrrev_b32 v7, 3, v4")
e(f"s_and_b32 s{sB}, s2, 24")
e(f"s_lshl4_add_u32 s{sRW}, s{sB}, s{sRW}")
e("v_lshlrev_b32 v7, 9, v7")
e(f"s_mov_b32 s{SX+2}, 2048000")
e("s_bitcmp1_b32 s2, 2")
e(f"s_cselect_b32 s{sB}, s{SX+2}, 0")
e(f"v_lshl_add_u32 v{VW}, v6, 4, v7")
e(f"s_lshl_b32 s{SX+3}, 1, 17")
e(f"s_lshl_b32 s{SW+3}, 1, 17")
e(f"s_lshl_b32 s{SW+2}, 5, 18")
e("v_and_b32 v1, 7, v0")
e(f"s_movk_i32 s{sK}, 16384")
e(f"s_lshl4_add_u32 s{sMW}, s3, {WBASE}")
e(f"v_lshl_add_u32 v1, v1, 4, s{sT}")
e(f"s_lshr_b32 s{sMX}, s3, 6")
e(f"s_mulk_i32 s{sMX}, {XBLK}")
e(f"v_lshl_add_u32 v{VX}, v2, 9, v1")
e(f"v_add_u32 v{VW2}, s{sK}, v{VW}")
ops = A.loader.split()
assert ops[0] == 'w'
e(f"s_getpc_b64 s[{RET}:{RET+1}]")
lab("L_pc2")
e(f"s_add_u32 s{RET}, s{RET}, L_sched-L_pc2")
e(f"s_addc_u32 s{RET+1}, s{RET+1}, 0")
lab("L_w")
e(f"s_mov_b32 m0, s{sMW}")
e(f"s_mov_b32 s{sO}, s{sRW}")
e("s_waitcnt lgkmcnt(0)")
lab("L_wl")
e(f"buffer_load_dwordx4 v{VW}, s[{SW}:{SW+3}], s{sO} offen {A.wflag} lds")
e("s_addk_i32 m0, 4096")
e("s_nop 0")
e(f"buffer_load_dwordx4 v{VW2}, s[{SW}:{SW+3}], s{sO} offen {A.wflag} lds")
e("s_addk_i32 m0, 4096")
e(f"s_lshl4_add_u32 s{sO}, s{sK}, s{sO}")
e(f"s_cmp_lt_u32 s{sO}, s{SW+2}")
e("s_cbranch_scc1 L_wl")
e(f"s_mov_b32 s{sMW}, m0")
e(f"s_lshl1_add_u32 s{sRW}, s{sK}, s{sRW}")
e(f"s_bitset0_b32 s{sRW}, 18")
e(f"s_setpc_b64 s[{RET}:{RET+1}]")
lab("L_x")
e(f"s_mov_b32 m0, s{sMX}")
e(f"v_mov_b32 v{VXT}, v{VX}")
e(f"s_mov_b32 s{sC}, 3")
lab("L_xl")
e(f"buffer_load_dwordx4 v{VXT}, s[{SX}:{SX+3}], s{sRX} offen {A.xflag} lds")
e(f"s_addk_i32 m0, {4*XBLK}")
e(f"v_add_u32 v{VXT}, s{sK}, v{VXT}")
e(f"s_sub_u32 s{sC}, s{sC}, 1")
e("s_cbranch_scc0 L_xl")
e("s_bfm_b64 exec, 40, 0")
e(f"buffer_load_dwordx4 v{VXT}, s[{SX}:{SX+3}], s{sRX} offen {A.xflag} lds")
e("s_mov_b64 exec, -1")
e(f"s_xor_b32 s{sMX}, s{sMX}, {XSLOT}")
e(f"s_addk_i32 s{sRX}, 128")
e(f"s_bitset0_b32 s{sRX}, 9")
e(f"s_setpc_b64 s[{RET}:{RET+1}]")
lab("L_sched")
e(f"s_add_u32 s{SX}, s{SX}, s{sB}")
e(f"s_addc_u32 s{SX+1}, s{SX+1}, 0")
used = {0, 12}
for op in ops[1:]:
    k, a = op[0], op[1:]
    if k == 'x': e(f"s_call_b64 s[{RET}:{RET+1}], L_x")
    elif k == 'w': e(f"s_call_b64 s[{RET}:{RET+1}], L_w")
    elif k == 'r': e(f"s_sub_u32 s{sMW}, s{sMW}, {3*WSLOT}")
    elif k == 'b':
        e(f"s_waitcnt vmcnt({int(a)})"); e("s_barrier")
    elif k == 'B': e("s_barrier")
    elif k == 'v': e(f"s_waitcnt vmcnt({int(a)})")
    elif k == 's': stamp_now(int(a)); used.add(int(a))
    else: raise ValueError(op)
if DIAG:
    e("s_branch L_ldiag")
lab("L_end0")
e("s_endpgm")
lab("L_ldend")
if DIAG:
    lab("L_ldiag")
    e(f"s_mov_b32 s{SC0}, s54"); e(f"s_mov_b32 s{SR0}, s56")
    for i in range(NST):
        if i not in used: e(f"s_mov_b32 s{SC0+i}, 0"); e(f"s_mov_b32 s{SR0+i}, 0")
    e("s_branch L_diag")

out.append(".p2align 6")
lab("L_consumer")
S_T0, S_E0B, S_WAVE, S_BATCH = 24, 25, 26, 27
S_TMP = 28
S_IT = 36
S_DX, S_DW = 37, 38
S_C1, S_C2, S_MASK = 39, 40, 41
S_WP, S_WM2, S_WC = 42, 43, 44
XR = [0, 48]
WR = [96, 136]
ACC = 176
VXB, VWF, VWG, VO0, VO1, VO2 = 240, 241, 242, 243, 244, 245
TT, TU = 246, 250
S_WM, S_WN = S_TMP, S_TMP + 1
e("s_load_dwordx2 s[8:9], s[0:1], 16")
if DIAG:
    for i in range(NST): e(f"s_mov_b32 s{SC0+i}, 0"); e(f"s_mov_b32 s{SR0+i}, 0")
e("v_and_b32 v0, 63, v0")
e(f"s_bfe_u32 s{S_WN}, s3, 0x20006")
e(f"s_and_b32 s{S_T0}, s2, 3")
e(f"s_lshr_b32 s{S_TMP+2}, s2, 5")
e(f"s_lshl3_add_u32 s{S_T0}, s{S_T0}, s{S_TMP+2}")
e(f"s_mul_i32 s{S_T0}, s{S_T0}, 125")
e(f"s_and_b32 s{S_E0B}, s2, 24")
e(f"s_lshl_b32 s{S_E0B}, s{S_E0B}, 4")
e(f"s_mov_b32 s{SO+2}, 2048000")
e("s_bitcmp1_b32 s2, 2")
e(f"s_cselect_b32 s{S_BATCH}, s{SO+2}, 0")
e(f"s_mov_b32 s{SO+3}, 0x20000")
e("v_and_b32 v2, 15, v0")
e("v_lshrrev_b32 v3, 4, v0")
e("v_lshrrev_b32 v4, 1, v2")
e("v_and_b32 v5, 1, v2")
e(f"v_mul_u32_u24 v6, {2*XBLK}, v4")
e("v_lshl_add_u32 v6, v5, 7, v6")
e(f"v_lshl_add_u32 v{VXB}, v3, 4, v6")
e("v_bfe_u32 v6, v0, 2, 2")
e("v_lshl_add_u32 v7, v3, 3, v6")
e("v_lshlrev_b32 v7, 8, v7")
e(f"v_xor_b32 v8, s{S_WN}, v6")
e("v_lshl_add_u32 v7, v8, 5, v7")
e("v_and_b32 v9, 1, v3")
e("v_lshl_add_u32 v7, v9, 7, v7")
e("v_and_b32 v8, 3, v0")
e("v_lshl_add_u32 v7, v8, 3, v7")
e(f"v_add_u32 v{VWF}, {WBASE}, v7")
e("v_xor_b32 v7, 0x80, v7")
e(f"v_add_u32 v{VWG}, {WBASE}, v7")
e("v_lshl_add_u32 v6, v4, 4, v5")
e("v_lshl_add_u32 v6, v9, 1, v6")
e("v_cmp_lt_u32 vcc, 0x70, v6")
e(f"v_add_u32 v6, s{S_T0}, v6")
e("v_lshlrev_b32 v6, 9, v6")
e("v_lshrrev_b32 v8, 1, v3")
e("v_lshl_add_u32 v6, v8, 4, v6")
e(f"s_lshl_b32 s{S_TMP+3}, s{S_WN}, 5")
e(f"s_add_u32 s{S_TMP+3}, s{S_TMP+3}, s{S_E0B}")
e(f"v_add_u32 v{VO0}, s{S_TMP+3}, v6")
e("v_bfrev_b32 v7, 1")
e(f"s_mov_b32 s{S_DX}, {XSLOT}")
e(f"s_mov_b32 s{S_WP}, {WSLOT}")
e(f"s_mov_b32 s{S_WM2}, {-2*WSLOT & 0xffffffff}")
e(f"s_mov_b32 s{S_WC}, 0")
e(f"v_cndmask_b32 v{VO2}, v{VO0}, v7, vcc")
for r in range(0, 64, 2):
    e(f"v_mov_b64 v[{ACC+r}:{ACC+r+1}], 0")
e(f"s_mov_b32 s{S_C1}, 0x4038aa3b")
e(f"s_mov_b32 s{S_C2}, 0xbfb8aa3b")
e(f"s_mov_b32 s{S_MASK}, 0x7fffffff")
e(f"s_mov_b32 s{S_IT}, 0")
S_P1, S_P2, S_ONE = 30, 32, 34
for i, v in enumerate([f"s{S_C1}", f"s{S_C1}", f"s{S_C2}", f"s{S_C2}", "1.0", "1.0"]): e(f"s_mov_b32 s{30+i}, {v}")
e("s_waitcnt lgkmcnt(0)")
if DIAG:
    e(f"s_mov_b32 s{SC0}, s54"); e(f"s_mov_b32 s{SR0}, s56"); e("s_mov_b32 m0, 2")
e(f"s_add_u32 s{SO}, s8, s{S_BATCH}")
e(f"s_addc_u32 s{SO+1}, s9, 0")

def xreg(s, f): return XR[s] + 4*f
def wreg(s, t, c): return WR[s] + 8*t + 4*c
def areg(f, c): return ACC + 8*f + 4*c
def rd_x(s, f, ks):
    r = xreg(s, f)
    return (('x', f), f"ds_read_b128 v[{r}:{r+3}], v{VXB} offset:{(f>>2)*XBLK + (f&3)*256 + ks*64}")
def rd_w(s, t, c, u, wslot):
    r = wreg(s, t, c) + 2*u
    return (('w', t, c), f"ds_read_b64_tr_b16 v[{r}:{r+1}], v{VWG if c else VWF} offset:{t*8192 + u*1024}")
def mf(s, f, c, t):
    a = areg(f, c); w = wreg(s, t, c); x = xreg(s, f+t)
    return f"v_mfma_f32_16x16x32_bf16 v[{a}:{a+3}], v[{w}:{w+3}], v[{x}:{x+3}], v[{a}:{a+3}]"
def order(kind):
    if kind == 't': return [(f, c, t) for t in range(5) for c in range(2) for f in range(8)]
    if kind == 'a': return [(f, c, t) for f in range(8) for c in range(2) for t in range(5)]
    if kind == 'A': return [(f, c, t) for f in range(8) for t in range(5) for c in range(2)]
    raise ValueError(kind)
def reads_for(s, ks, wslot, seq):
    l = []; seen = set()
    for (f, c, t) in seq:
        if ('w', t, c) not in seen:
            seen.add(('w', t, c)); l += [rd_w(s, t, c, 0, wslot), rd_w(s, t, c, 1, wslot)]
        if ('x', f+t) not in seen:
            seen.add(('x', f+t)); l.append(rd_x(s, f+t, ks))
    assert len(l) == 32
    return l
def need_waits(seq, rd, upto):
    last = {}
    for i, (key, _) in enumerate(rd): last[key] = i
    w = {}; cur = 99
    for i, (f, c, t) in enumerate(seq[:upto]):
        n = len(rd) - 1 - max(last[('w', t, c)], last[('x', f+t)])
        n = min(n, 15)
        if n < cur: w[i] = n; cur = n
    return w
SEQ = order(A.order)
def step(cur, rd_cur, rd, pre=None):
    waits = need_waits(SEQ, rd_cur, A.bar)
    n = 80
    slots = {}
    span = A.rdend - A.bar + 1
    for k in range(32):
        g = A.bar + (k * span) // 32
        slots.setdefault(g, []).append(rd[k][1])
    for g in range(n):
        if g in waits: e(f"s_waitcnt lgkmcnt({waits[g]})")
        if g == A.bar - 10: stamp_issue()
        if g == A.bar:
            e("s_waitcnt lgkmcnt(0)")
            e("s_barrier")
            stamp_commit()
        f, c, t = SEQ[g]
        e(mf(cur, f, c, t))
        if pre and 12 <= g < 12 + len(pre): e(pre[g-12])
        for r in slots.get(g, []): e(r)

e("s_barrier")
stamp_now(1)
rdA = reads_for(0, 0, 0, SEQ)
rdB = reads_for(1, 1, 1, SEQ)
for r in rdA: e(r[1])
out.append(".p2align 6")
lab("L_loop")
WADV = [f"s_add_u32 s{S_WC}, s{S_WC}, 1", f"s_cmp_eq_u32 s{S_WC}, 3", f"s_cselect_b32 s{S_DW}, s{S_WM2}, s{S_WP}", f"s_cselect_b32 s{S_WC}, 0, s{S_WC}",
        f"v_add_u32 v{VWF}, s{S_DW}, v{VWF}", f"v_add_u32 v{VWG}, s{S_DW}, v{VWG}"]
step(0, rdA, rdB, pre=WADV)
step(1, rdB, rdA, pre=WADV + [f"v_add_u32 v{VXB}, s{S_DX}, v{VXB}", f"s_sub_u32 s{S_DX}, 0, s{S_DX}", f"s_add_u32 s{S_IT}, s{S_IT}, 1"])
e(f"s_cmp_lt_u32 s{S_IT}, 3")
e("s_cbranch_scc1 L_loop")

def store_ops(f, Q):
    l = []
    l.append(("s_nop 1", 8, ''))
    l.append((f"v_permlane16_swap_b32 v{Q}, v{Q+2}", 4, ''))
    l.append((f"v_permlane16_swap_b32 v{Q+1}, v{Q+3}", 4, ''))
    vo = [VO0, VO0, VO0, VO2][f >> 1]
    o = (f & ~1) * 1024
    if o < 4096: l.append((f"buffer_store_dwordx4 v[{Q}:{Q+3}], v{vo}, s[{SO}:{SO+3}], 0 offen offset:{o} {A.store}", 4, ''))
    else: l.append((f"buffer_store_dwordx4 v[{Q}:{Q+3}], v{vo}, s[{SO}:{SO+3}], s{S_IT} offen offset:{o-4096} {A.store}", 4, ''))
    return l
def epi10(f, pk=False):
    F = areg(f, 0); G = areg(f, 1)
    P = areg(f & ~1, 0) + 2*(f & 1)
    l = []
    if not pk:
        for r in range(4): l.append((f"v_mul_f32 v{TT+r}, s{S_C1}, v{F+r}", 4, 'F'))
        for r in range(4): l.append((f"v_mul_f32 v{G+r}, s{S_C2}, v{G+r}", 4, 'G'))
    else:
        for r in (0, 2): l.append((f"v_pk_mul_f32 v[{TT+r}:{TT+r+1}], v[{F+r}:{F+r+1}], s[{S_P1}:{S_P1+1}]", 4, 'F'))
        for r in (0, 2): l.append((f"v_pk_mul_f32 v[{G+r}:{G+r+1}], v[{G+r}:{G+r+1}], s[{S_P2}:{S_P2+1}]", 4, 'G'))
    for r in range(4): l.append((f"v_exp_f32 v{TT+r}, -abs(v{TT+r})", 8, ''))
    for r in range(4): l.append((f"v_exp_f32 v{G+r}, v{G+r}", 8, ''))
    if not pk:
        for r in range(4): l.append((f"v_add_f32 v{TU+r}, 1.0, v{TT+r}", 4, ''))
        for r in range(4): l.append((f"v_fma_f32 v{TU+r}, v{TU+r}, v{G+r}, v{TU+r}", 4, ''))
        for r in range(4): l.append((f"v_sub_f32 v{G+r}, 1.0, v{TT+r}", 4, ''))
    else:
        for r in (0, 2): l.append((f"v_pk_add_f32 v[{TU+r}:{TU+r+1}], v[{TT+r}:{TT+r+1}], s[{S_ONE}:{S_ONE+1}]", 4, ''))
        for r in (0, 2): l.append((f"v_pk_fma_f32 v[{TU+r}:{TU+r+1}], v[{TU+r}:{TU+r+1}], v[{G+r}:{G+r+1}], v[{TU+r}:{TU+r+1}]", 4, ''))
        for r in (0, 2): l.append((f"v_pk_add_f32 v[{G+r}:{G+r+1}], v[{TT+r}:{TT+r+1}], s[{S_ONE}:{S_ONE+1}] neg_lo:[1,0] neg_hi:[1,0]", 4, ''))
    for r in range(4): l.append((f"v_rcp_f32 v{TU+r}, v{TU+r}", 8, ''))
    for r in range(4): l.append((f"v_bfi_b32 v{G+r}, s{S_MASK}, v{G+r}, v{F+r}", 4, ''))
    if not pk:
        for r in range(4): l.append((f"v_mul_f32 v{G+r}, v{G+r}, v{TU+r}", 4, ''))
    else:
        for r in (0, 2): l.append((f"v_pk_mul_f32 v[{G+r}:{G+r+1}], v[{G+r}:{G+r+1}], v[{TU+r}:{TU+r+1}]", 4, ''))
    l.append((f"v_cvt_pk_bf16_f32 v{P}, v{G}, v{G+1}", 4, ''))
    l.append((f"v_cvt_pk_bf16_f32 v{P+1}, v{G+2}, v{G+3}", 4, ''))
    if f & 1: l += store_ops(f, areg(f & ~1, 0))
    return [(t, c_, k, f) for (t, c_, k) in l]
def epi9(f):
    F = areg(f, 0); G = areg(f, 1)
    T = TT + 4*(f & 1)
    P = areg(f & ~1, 0) + 2*(f & 1)
    def grp(fmt, cost, k, pkfmt=None):
        return ('grp', [fmt(r) for r in range(4)], cost, k, [pkfmt(r) for r in (0, 2)] if pkfmt else None)
    def pr(b, r): return f"v[{b+r}:{b+r+1}]"
    gs = [
        grp(lambda r: f"v_mul_f32 v{T+r}, s{S_C1}, v{F+r}", 4, 'F', lambda r: f"v_pk_mul_f32 {pr(T,r)}, {pr(F,r)}, s[{S_P1}:{S_P1+1}]"),
        grp(lambda r: f"v_bfi_b32 v{F+r}, s{S_MASK}, 0.5, v{F+r}", 4, 'F'),
        grp(lambda r: f"v_exp_f32 v{T+r}, -abs(v{T+r})", 8, ''),
        grp(lambda r: f"v_fma_f32 v{F+r}, v{T+r}, v{F+r}, v{F+r}", 4, '', lambda r: f"v_pk_fma_f32 {pr(F,r)}, {pr(T,r)}, {pr(F,r)}, {pr(F,r)}"),
        grp(lambda r: f"v_mul_f32 v{G+r}, s{S_C2}, v{G+r}", 4, 'G', lambda r: f"v_pk_mul_f32 {pr(G,r)}, {pr(G,r)}, s[{S_P2}:{S_P2+1}]"),
        grp(lambda r: f"v_exp_f32 v{G+r}, v{G+r}", 8, ''),
        grp(lambda r: f"v_fma_f32 v{G+r}, v{F+r}, v{G+r}, v{F+r}", 4, '', lambda r: f"v_pk_fma_f32 {pr(G,r)}, {pr(F,r)}, {pr(G,r)}, {pr(F,r)}"),
        grp(lambda r: f"v_rcp_f32 v{G+r}, v{G+r}", 8, ''),
        grp(lambda r: f"v_fma_f32 v{G+r}, -abs(v{F+r}), v{G+r}, v{G+r}", 4, ''),
    ]
    l = []
    for gi, (_, txts, cost, k, pks) in enumerate(gs):
        for r, t in enumerate(txts):
            l.append((t, cost, k, f, (pks[r // 2] if pks and r % 2 == 0 else None)))
    l.append((f"v_cvt_pk_bf16_f32 v{P}, v{G}, v{G+1}", 4, '', f, None))
    l.append((f"v_cvt_pk_bf16_f32 v{P+1}, v{G+2}, v{G+3}", 4, '', f, None))
    if f & 1: l += [(t, c_, k, f, None) for (t, c_, k) in store_ops(f, areg(f & ~1, 0))]
    return l

L = A.lag
gl = [(f, 0) for f in range(L+1)]
for f in range(8):
    gl.append((f, 1))
    if f + L + 1 < 8: gl.append((f + L + 1, 0))
seqT = order('a' if A.tord == 'a' else 'A')
rd7 = reads_for(1, 1, 1, seqT)
last7 = {}
for i, (key, _) in enumerate(rd7): last7[key] = i
stamp_issue()
e("s_waitcnt lgkmcnt(0)")
e(f"v_add_u32 v{VWF}, s{S_WP}, v{VWF}"); e(f"v_add_u32 v{VWG}, s{S_WP}, v{VWG}")
e("s_barrier")
stamp_commit()
e(f"s_movk_i32 s{S_IT}, 4096")
ms = []
for (f, s) in gl:
    if A.tord == 'a':
        for c in range(2):
            for t in range(5): ms.append((s, f, c, t))
    else:
        for t in range(5):
            for c in range(2): ms.append((s, f, c, t))
issued = 0; done = -1
pend = []
wrote = {}
fin = set()
nxt = 0
def states_since(pos):
    n = 0
    for l in out[pos+1:]:
        m = re.match(r"\s*s_nop (\d+)", l)
        n += (int(m.group(1)) + 1) if m else 1
    return n
def emit_epi(op, txt=None):
    k, f = op[2], op[3]
    if k:
        d = states_since(wrote[(f, 0 if k == 'F' else 1)])
        if d < 8: e(f"s_nop {8-d-1}")
    tx = txt or op[0]
    if 's' in A.dbg and ('buffer_store' in tx or 'permlane' in tx): return
    if 'p' in A.dbg and ('permlane' in tx): return
    if 't' in A.dbg and ('v_exp' in tx or 'v_rcp' in tx): tx = "v_mov_b32 v254, v255"
    if 'n' in A.dbg and not ('v_exp' in tx or 'v_rcp' in tx): tx = "v_mov_b32 v254, v255"
    if 'm' in A.dbg: tx = "v_mov_b32 v254, v255"
    e(tx)
def ready(op):
    k, f = op[2], op[3]
    if not k: return True
    c = 0 if k == 'F' else 1
    return (f, c) in fin and states_since(wrote[(f, c)]) >= 8
def need_of(f, c, t): return max(last7[('w', t, c)], last7[('x', f+t)])
for g, (s, f, c, t) in enumerate(ms):
    if s == 1:
        need = need_of(f, c, t)
        assert need < issued, (g, need, issued)
        if need > done:
            la = need
            for (s2, f2, c2, t2) in ms[g+1:g+3]:
                if s2 == 1 and need_of(f2, c2, t2) < issued: la = max(la, need_of(f2, c2, t2))
            n = min(issued - 1 - la, 15)
            e(f"s_waitcnt lgkmcnt({n})"); done = issued - 1 - n
    e(mf(s, f, c, t))
    wrote[(f, c)] = len(out) - 1
    if s == 1 and t == 4: fin.add((f, c))
    k = 0
    while issued < 32 and k < (2 if issued < 25 else 1):
        e(rd7[issued][1]); issued += 1; k += 1
    quota = A.quota
    while quota > 0:
        if not pend:
            if nxt < 8 and (nxt, 0) in fin and (A.epi == 9 or (nxt, 1) in fin):
                pend = epi9(nxt) if A.epi == 9 else epi10(nxt); nxt += 1
            else: break
        if pend[0][1] > quota or not ready(pend[0]): break
        op = pend.pop(0); emit_epi(op); quota -= op[1]
stamp_issue()
if A.epi == 9:
    rest = list(pend)
    for ff in range(nxt, 8): rest += epi9(ff)
    i = 0
    while i < len(rest):
        op = rest[i]
        if A.pk and op[4]:
            emit_epi(op, op[4]); i += 2
        else:
            emit_epi(op); i += 1
else:
    for op in pend: emit_epi(op)
    for ff in range(nxt, 8):
        for op in epi10(ff, A.pk): emit_epi(op)
if DIAG:
    e("s_waitcnt lgkmcnt(0)"); stamp_commit(10)
    stamp_now(11)
    e("s_waitcnt vmcnt(0)")
    lab("L_diag")
    e("s_load_dwordx2 s[58:59], s[0:1], 32")
    e("s_waitcnt vmcnt(0) lgkmcnt(0)")
    stamp_now(12)
    e("s_barrier")
    e(f"v_mbcnt_lo_u32_b32 v0, -1, 0")
    e(f"v_mbcnt_hi_u32_b32 v0, -1, v0")
    e("s_mov_b32 s52, s58"); e("s_mov_b32 s53, s59"); e("s_mov_b32 s54, 0x100000"); e("s_mov_b32 s55, 0x20000")
    e("v_mov_b32 v1, 0")
    vals = [f"s{SC0+i}" for i in range(NST)] + [f"s{SR0+i}" for i in range(NST)]
    for i, s in enumerate(vals):
        e(f"v_mov_b32 v2, {s}")
        e(f"v_cmp_eq_u32 vcc, {i}, v0")
        e("s_nop 1")
        e("v_cndmask_b32 v1, v1, v2, vcc")
    e("s_lshl_b32 s56, s2, 3")
    e("s_lshr_b32 s49, s3, 6")
    e("s_add_u32 s56, s56, s49")
    e("s_lshl_b32 s56, s56, 7")
    e("v_lshlrev_b32 v3, 2, v0")
    e("v_cmp_gt_u32 vcc, 32, v0")
    e("s_and_saveexec_b64 s[4:5], vcc")
    e("buffer_store_dword v1, v3, s[52:55], s56 offen")
    e("s_waitcnt vmcnt(0)")
lab("L_end")
e("s_endpgm")
lab("L_cend")
if A.pad: out.append(f".fill {A.pad//4}, 4, 0xbf810000")

footer = f"""
.section .rodata,"a"
.p2align 6
.amdhsa_kernel {NAME}_kernel
  .amdhsa_next_free_vgpr 256
  .amdhsa_next_free_sgpr 96
  .amdhsa_accum_offset 256
  .amdhsa_group_segment_fixed_size 0
  .amdhsa_kernarg_size 40
  .amdhsa_user_sgpr_count 2
  .amdhsa_user_sgpr_kernarg_segment_ptr 1
  .amdhsa_system_sgpr_workgroup_id_x 1
.end_amdhsa_kernel
"""

def labels(text):
    import subprocess, tempfile, os
    d = tempfile.mkdtemp()
    open(d + "/a.s", "w").write(text)
    subprocess.check_call(["clang", "-x", "assembler", "-target", "amdgcn-amd-amdhsa", "-mcpu=gfx950", "-c", d + "/a.s", "-o", d + "/a.o"])
    o = subprocess.check_output(["llvm-objdump", "-t", d + "/a.o"], text=True)
    r = {}
    for l in o.splitlines():
        p = l.split()
        if len(p) >= 5 and p[-1].startswith("L_"): r[p[-1]] = int(p[0], 16)
    return r
text = header + "\n".join(out) + "\n" + footer
lb = labels(text)
sys.stderr.write("ldend %d consumer %d loop %d end %d\n" % (lb["L_ldend"], lb["L_consumer"], lb["L_loop"], lb["L_cend"]))
if A.cw:
    need = lb["L_pc"] + 255 * A.cw + 64 - lb["L_cend"]
    if need > 0: text = text.replace("L_cend:\n", "L_cend:\n.fill %d, 4, 0xbf810000\n" % ((need + 3) // 4))
    else: sys.stderr.write("WARNING: warm range ends %d bytes before the code end\n" % (-need))
sys.stdout.write(text)
```

```python
import sys, argparse, re

ap = argparse.ArgumentParser()
ap.add_argument("--diag", action="store_true")
ap.add_argument("--loader", default="w x w b10 x b5 w b0 r w x b5 w b0 w x b5 r w b0 w b0")
ap.add_argument("--store", default="nt", help="store cache flags")
ap.add_argument("--order", default="a", help="main-step MFMA order")
ap.add_argument("--bar", type=int, default=40, help="MFMA index of the mid-step barrier")
ap.add_argument("--rdend", type=int, default=74, help="last MFMA gap carrying a read")
ap.add_argument("--lag", type=int, default=1)
ap.add_argument("--xflag", default="nt", help="cache flags on X DMA")
ap.add_argument("--wflag", default="", help="cache flags on W DMA")
ap.add_argument("--pk", type=int, default=1)
ap.add_argument("--quota", type=int, default=8)
ap.add_argument("--pad", type=int, default=0)
ap.add_argument("--cw", type=int, default=0, help="code warm stride (bytes per lane, 0=off)")
ap.add_argument("--epi", type=int, default=9)
ap.add_argument("--tord", default="a", help="tail group order: a (chain) | t")
ap.add_argument("--dbg", default="", help="diagnostic tail edits: s=no store/permlane in gaps, t=trans->mov, w=waits right after MFMA")
ap.add_argument("--pfw", default="", help="p0:n vector L2 prefetch of W phases")
ap.add_argument("--pfx", default="", help="c0:n vector L2 prefetch of X blocks")
ap.add_argument("--pfpos", default="first", help="first | op P in loader")
ap.add_argument("--rot", type=int, default=1)
ap.add_argument("--ntx", type=int, default=0, help="xor wg id with this (diagnostic remap)")
ap.add_argument("--pf1", type=int, default=0, help="prefetch own tap of W1 first")
ap.add_argument("--wrot", type=int, default=0, help="tap rotation by m-tile")
ap.add_argument("--xrot", type=int, default=0, help="X instr rotation by n-tile")
A = ap.parse_args()
DIAG = A.diag

NAME = "standalone__autoregressive_conv_wavernn__speech"
XBLK = 1040
XSLOT = 20480
WBASE = 2 * XSLOT
WSLOT = 40960
LDS_BYTES = WBASE + 3 * WSLOT

out = []
def e(s): out.append("    " + s)
def lab(s): out.append(s + ":")

header = f"""; x (2,4000,256) bf16 @0, w (5,256,512) bf16 @8, out (2,4000,256) bf16 @16, debug @24, ws @32
; @launch grid=(256,1,1) block=(512,1,1) lds={LDS_BYTES}
.amdgcn_target "amdgcn-amd-amdhsa--gfx950"
.text
.globl {NAME}_kernel
.p2align 8
.type {NAME}_kernel,@function
{NAME}_kernel:
"""
SX, SW, SO = 12, 16, 20
NST = 16
SC0, SR0 = 60, 76
def stamp_issue():
    if DIAG:
        e("s_memtime s[50:51]"); e("s_memrealtime s[52:53]")
def stamp_commit(idx=None):
    if DIAG:
        if idx is None:
            e(f"s_movreld_b32 s{SC0}, s50"); e(f"s_movreld_b32 s{SR0}, s52"); e("s_add_u32 m0, m0, 1")
        else:
            e(f"s_mov_b32 s{SC0+idx}, s50"); e(f"s_mov_b32 s{SR0+idx}, s52")
def stamp_now(idx):
    if DIAG:
        stamp_issue(); e("s_waitcnt lgkmcnt(0)"); stamp_commit(idx)

if DIAG:
    e("s_memtime s[54:55]"); e("s_memrealtime s[56:57]")
e(f"s_load_dwordx2 s[{SW}:{SW+1}], s[0:1], 8")
e(f"s_load_dwordx2 s[{SX}:{SX+1}], s[0:1], 0")
e("v_readfirstlane_b32 s3, v0")
e("s_lshr_b32 s28, s2, 8")
e("s_cbranch_scc1 L_end0")
if A.ntx: e("s_mov_b32 s48, s2"); e(f"s_xor_b32 s2, s2, {A.ntx}")
e("s_bitcmp1_b32 s3, 8")
e("s_cbranch_scc1 L_consumer")

sR, sT, sRX, sRW, sB, sMX, sS, sMW, sK, sO, sC = 20, 21, 22, 23, 24, 25, 26, 27, 28, 29, 30
sTau, sWS, sT1 = 31, 36, 37
RET, PC = 32, 34
VX, VW, VXT, VW2 = 3, 5, 7, 10
e("v_lshrrev_b32 v2, 3, v0")
e("v_lshrrev_b32 v4, 4, v0")
e(f"s_and_b32 s{sR}, s2, 3")
e(f"s_lshr_b32 s{sT}, s2, 5")
e("v_bfi_b32 v4, 6, v2, v4")
if A.wrot:
    e(f"s_mul_i32 s{sTau}, s{sT}, 5")
e(f"s_lshl3_add_u32 s{sT}, s{sR}, s{sT}")
e("v_xor_b32 v4, v4, v0")
e(f"s_mul_i32 s{sT}, s{sT}, 64000")
e("v_bfi_b32 v4, 14, v4, v0")
e(f"s_addk_i32 s{sT}, 0xf000")
e("v_and_b32 v6, 7, v4")
if A.rot == 1: pass
elif A.rot == 3: e(f"s_min_u32 s{sR}, s{sR}, 2")
elif A.rot == 4: e(f"s_and_b32 s{sR}, s2, 1")
elif A.rot == 5: e(f"s_and_b32 s{sR}, s2, 2")
elif A.rot == 0: e(f"s_mov_b32 s{sR}, 0")
e(f"s_lshl_b32 s{sRX}, s{sR}, 7")
e(f"s_lshl_b32 s{sRW}, s{sR}, 16")
e("v_lshrrev_b32 v7, 3, v4")
e(f"s_and_b32 s{sB}, s2, 24")
e(f"s_lshl4_add_u32 s{sRW}, s{sB}, s{sRW}")
e("v_lshlrev_b32 v7, 9, v7")
e(f"s_mov_b32 s{SX+2}, 2048000")
e("s_bitcmp1_b32 s2, 2")
e(f"s_cselect_b32 s{sB}, s{SX+2}, 0")
e(f"v_lshl_add_u32 v{VW}, v6, 4, v7")
e(f"s_lshl_b32 s{SX+3}, 1, 17")
e(f"s_lshl_b32 s{SW+3}, 1, 17")
e(f"s_lshl_b32 s{SW+2}, 5, 18")
e("v_and_b32 v1, 7, v0")
e(f"s_movk_i32 s{sK}, 16384")
e(f"s_lshl_b32 s{sWS}, 5, 13")
e(f"v_lshl_add_u32 v1, v1, 4, s{sT}")
e(f"s_lshr_b32 s{sMX}, s3, 6")
if A.wrot:
    e(f"s_and_b32 s{sTau}, s{sTau}, -8")
    e(f"s_add_u32 s{sMW}, s{sMX}, s{sTau}")
    e(f"s_lshl_b32 s{sMW}, s{sMW}, 10")
    e(f"s_add_u32 s{sMW}, s{sMW}, s{sWS}")
    e(f"s_lshl_b32 s{sTau}, s{sTau}, 15")
else:
    e(f"s_lshl4_add_u32 s{sMW}, s3, s{sWS}")
e(f"s_mulk_i32 s{sMX}, {XBLK}")
e(f"v_lshl_add_u32 v{VX}, v2, 9, v1")
e(f"v_add_u32 v{VW2}, s{sK}, v{VW}")
ops = A.loader.split()
assert ops[0] == 'x'
e(f"s_getpc_b64 s[{RET}:{RET+1}]")
lab("L_pc2")
e(f"s_add_u32 s{RET}, s{RET}, L_sched-L_pc2")
e(f"s_addc_u32 s{RET+1}, s{RET+1}, 0")
if A.pf1:
    if A.wrot: e(f"s_add_u32 s{sO}, s{sRW}, s{sTau}")
    e(f"s_lshl1_add_u32 s{sO}, s{sK}, s{sO if A.wrot else sRW}")
e("s_waitcnt lgkmcnt(0)")
if A.pf1:
    e(f"buffer_load_dword v8, v{VW}, s[{SW}:{SW+3}], s{sO} offen")
    e(f"buffer_load_dword v9, v{VW2}, s[{SW}:{SW+3}], s{sO} offen")
e(f"s_add_u32 s{SX}, s{SX}, s{sB}")
e(f"s_addc_u32 s{SX+1}, s{SX+1}, 0")
lab("L_x")
e(f"s_mov_b32 m0, s{sMX}")
e(f"v_mov_b32 v{VXT}, v{VX}")
e(f"s_mov_b32 s{sC}, 3")
lab("L_xl")
e(f"buffer_load_dwordx4 v{VXT}, s[{SX}:{SX+3}], s{sRX} offen {A.xflag} lds")
e(f"s_addk_i32 m0, {4*XBLK}")
e(f"v_add_u32 v{VXT}, s{sK}, v{VXT}")
e(f"s_sub_u32 s{sC}, s{sC}, 1")
e("s_cbranch_scc0 L_xl")
e("s_bfm_b64 exec, 40, 0")
e(f"buffer_load_dwordx4 v{VXT}, s[{SX}:{SX+3}], s{sRX} offen {A.xflag} lds")
e("s_mov_b64 exec, -1")
e(f"s_xor_b32 s{sMX}, s{sMX}, {XSLOT}")
e(f"s_addk_i32 s{sRX}, 128")
e(f"s_bitset0_b32 s{sRX}, 9")
e(f"s_setpc_b64 s[{RET}:{RET+1}]")
lab("L_w")
e(f"s_mov_b32 m0, s{sMW}")
if A.wrot:
    e(f"s_add_u32 s{sS}, s{sRW}, s{sTau}")
    e(f"s_mov_b32 s{sO}, s{sS}")
else:
    e(f"s_mov_b32 s{sO}, s{sRW}")
lab("L_wl")
e(f"buffer_load_dwordx4 v{VW}, s[{SW}:{SW+3}], s{sO} offen {A.wflag} lds")
e("s_addk_i32 m0, 4096")
if not A.wrot:
    e("s_nop 0")
    e(f"buffer_load_dwordx4 v{VW2}, s[{SW}:{SW+3}], s{sO} offen {A.wflag} lds")
    e("s_addk_i32 m0, 4096")
    e(f"s_lshl4_add_u32 s{sO}, s{sK}, s{sO}")
    e(f"s_cmp_lt_u32 s{sO}, s{SW+2}")
    e("s_cbranch_scc1 L_wl")
else:
    e(f"s_lshl4_add_u32 s{sT1}, s{sK}, s{sO}")
    e(f"buffer_load_dwordx4 v{VW2}, s[{SW}:{SW+3}], s{sO} offen {A.wflag} lds")
    e("s_addk_i32 m0, 4096")
    e(f"s_sub_u32 s{sO}, s{sT1}, s{SW+2}")
    e(f"s_cselect_b32 s{sO}, s{sT1}, s{sO}")
    e(f"s_cselect_b32 s{sT1}, 0, s{sWS}")
    e(f"s_sub_u32 m0, m0, s{sT1}")
    e(f"s_cmp_lg_u32 s{sO}, s{sS}")
    e("s_cbranch_scc1 L_wl")
e(f"s_add_u32 s{sMW}, s{sMW}, s{sWS}")
e(f"s_lshl1_add_u32 s{sRW}, s{sK}, s{sRW}")
e(f"s_bitset0_b32 s{sRW}, 18")
e(f"s_setpc_b64 s[{RET}:{RET+1}]")
lab("L_sched")
used = {0, 12}
late = []
cur_out = out
def sched_ops(ops):
    for op in ops:
        k, a = op[0], op[1:]
        if k == 'x': e(f"s_call_b64 s[{RET}:{RET+1}], L_x")
        elif k == 'w': e(f"s_call_b64 s[{RET}:{RET+1}], L_w")
        elif k == 'r': e(f"s_sub_u32 s{sMW}, s{sMW}, {3*WSLOT}")
        elif k == 'b':
            e(f"s_waitcnt vmcnt({int(a)})"); e("s_barrier")
        elif k == 'B': e("s_barrier")
        elif k == 'v': e(f"s_waitcnt vmcnt({int(a)})")
        elif k == 's': stamp_now(int(a)); used.add(int(a))
        else: raise ValueError(op)
def sched_end():
    if DIAG: e("s_branch L_ldiag")
    else: e("s_endpgm")
if 'L' in ops:
    i = ops.index('L')
    sched_ops(ops[1:i]); e("s_branch L_late"); LATE = ops[i+1:]
else:
    sched_ops(ops[1:]); sched_end(); LATE = None
lab("L_end0")
e("s_endpgm")
lab("L_ldend")
def ldiag():
    lab("L_ldiag")
    e(f"s_mov_b32 s{SC0}, s54"); e(f"s_mov_b32 s{SR0}, s56")
    for i in range(NST):
        if i not in used: e(f"s_mov_b32 s{SC0+i}, 0"); e(f"s_mov_b32 s{SR0+i}, 0")
    e("s_branch L_diag")

out.append(".p2align 6")
lab("L_consumer")
S_T0, S_E0B, S_WAVE, S_BATCH = 24, 25, 26, 27
S_TMP = 28
S_IT = 36
S_DX, S_DW = 37, 38
S_C1, S_C2, S_MASK = 39, 40, 41
S_WP, S_WM2, S_WC = 42, 43, 44
XR = [0, 48]
WR = [96, 136]
ACC = 176
VXB, VWF, VWG, VO0, VO1, VO2 = 240, 241, 242, 243, 244, 245
TT, TU = 246, 250
S_WM, S_WN = S_TMP, S_TMP + 1
e("s_load_dwordx2 s[8:9], s[0:1], 16")
if LATE is not None:
    e("s_branch L_cons2")
    lab("L_late")
    sched_ops(LATE); sched_end()
    lab("L_cons2")
if DIAG:
    for i in range(NST): e(f"s_mov_b32 s{SC0+i}, 0"); e(f"s_mov_b32 s{SR0+i}, 0")
e("v_and_b32 v0, 63, v0")
e(f"s_bfe_u32 s{S_WN}, s3, 0x20006")
e(f"s_and_b32 s{S_T0}, s2, 3")
e(f"s_lshr_b32 s{S_TMP+2}, s2, 5")
e(f"s_lshl3_add_u32 s{S_T0}, s{S_T0}, s{S_TMP+2}")
e(f"s_mul_i32 s{S_T0}, s{S_T0}, 125")
e(f"s_and_b32 s{S_E0B}, s2, 24")
e(f"s_lshl_b32 s{S_E0B}, s{S_E0B}, 4")
e(f"s_mov_b32 s{SO+2}, 2048000")
e("s_bitcmp1_b32 s2, 2")
e(f"s_cselect_b32 s{S_BATCH}, s{SO+2}, 0")
e(f"s_mov_b32 s{SO+3}, 0x20000")
e("v_and_b32 v2, 15, v0")
e("v_lshrrev_b32 v3, 4, v0")
e("v_lshrrev_b32 v4, 1, v2")
e("v_and_b32 v5, 1, v2")
e(f"v_mul_u32_u24 v6, {2*XBLK}, v4")
e("v_lshl_add_u32 v6, v5, 7, v6")
e(f"v_lshl_add_u32 v{VXB}, v3, 4, v6")
e("v_bfe_u32 v6, v0, 2, 2")
e("v_lshl_add_u32 v7, v3, 3, v6")
e("v_lshlrev_b32 v7, 8, v7")
e(f"v_xor_b32 v8, s{S_WN}, v6")
e("v_lshl_add_u32 v7, v8, 5, v7")
e("v_and_b32 v9, 1, v3")
e("v_lshl_add_u32 v7, v9, 7, v7")
e("v_and_b32 v8, 3, v0")
e("v_lshl_add_u32 v7, v8, 3, v7")
e(f"v_add_u32 v{VWF}, {WBASE}, v7")
e("v_xor_b32 v7, 0x80, v7")
e(f"v_add_u32 v{VWG}, {WBASE}, v7")
e("v_lshl_add_u32 v6, v4, 4, v5")
e("v_lshl_add_u32 v6, v9, 1, v6")
e("v_cmp_lt_u32 vcc, 0x70, v6")
e(f"v_add_u32 v6, s{S_T0}, v6")
e("v_lshlrev_b32 v6, 9, v6")
e("v_lshrrev_b32 v8, 1, v3")
e("v_lshl_add_u32 v6, v8, 4, v6")
e(f"s_lshl_b32 s{S_TMP+3}, s{S_WN}, 5")
e(f"s_add_u32 s{S_TMP+3}, s{S_TMP+3}, s{S_E0B}")
e(f"v_add_u32 v{VO0}, s{S_TMP+3}, v6")
e("v_bfrev_b32 v7, 1")
e(f"s_mov_b32 s{S_DX}, {XSLOT}")
e(f"s_mov_b32 s{S_WP}, {WSLOT}")
e(f"s_mov_b32 s{S_WM2}, {-2*WSLOT & 0xffffffff}")
e(f"s_mov_b32 s{S_WC}, 0")
e(f"v_cndmask_b32 v{VO2}, v{VO0}, v7, vcc")
for r in range(0, 64, 2):
    e(f"v_mov_b64 v[{ACC+r}:{ACC+r+1}], 0")
e(f"s_mov_b32 s{S_C1}, 0x4038aa3b")
e(f"s_mov_b32 s{S_C2}, 0xbfb8aa3b")
e(f"s_mov_b32 s{S_MASK}, 0x7fffffff")
e(f"s_mov_b32 s{S_IT}, 0")
S_P1, S_P2, S_ONE = 30, 32, 34
for i, v in enumerate([f"s{S_C1}", f"s{S_C1}", f"s{S_C2}", f"s{S_C2}", "1.0", "1.0"]): e(f"s_mov_b32 s{30+i}, {v}")
e("s_waitcnt lgkmcnt(0)")
if DIAG:
    e(f"s_mov_b32 s{SC0}, s54"); e(f"s_mov_b32 s{SR0}, s56"); e("s_mov_b32 m0, 2")
e(f"s_add_u32 s{SO}, s8, s{S_BATCH}")
e(f"s_addc_u32 s{SO+1}, s9, 0")

def xreg(s, f): return XR[s] + 4*f
def wreg(s, t, c): return WR[s] + 8*t + 4*c
def areg(f, c): return ACC + 8*f + 4*c
def rd_x(s, f, ks):
    r = xreg(s, f)
    return (('x', f), f"ds_read_b128 v[{r}:{r+3}], v{VXB} offset:{(f>>2)*XBLK + (f&3)*256 + ks*64}")
def rd_w(s, t, c, u, wslot):
    r = wreg(s, t, c) + 2*u
    return (('w', t, c), f"ds_read_b64_tr_b16 v[{r}:{r+1}], v{VWG if c else VWF} offset:{t*8192 + u*1024}")
def mf(s, f, c, t):
    a = areg(f, c); w = wreg(s, t, c); x = xreg(s, f+t)
    return f"v_mfma_f32_16x16x32_bf16 v[{a}:{a+3}], v[{w}:{w+3}], v[{x}:{x+3}], v[{a}:{a+3}]"
def order(kind):
    if kind == 't': return [(f, c, t) for t in range(5) for c in range(2) for f in range(8)]
    if kind == 'a': return [(f, c, t) for f in range(8) for c in range(2) for t in range(5)]
    if kind == 'A': return [(f, c, t) for f in range(8) for t in range(5) for c in range(2)]
    raise ValueError(kind)
def reads_for(s, ks, wslot, seq):
    l = []; seen = set()
    for (f, c, t) in seq:
        if ('w', t, c) not in seen:
            seen.add(('w', t, c)); l += [rd_w(s, t, c, 0, wslot), rd_w(s, t, c, 1, wslot)]
        if ('x', f+t) not in seen:
            seen.add(('x', f+t)); l.append(rd_x(s, f+t, ks))
    assert len(l) == 32
    return l
def need_waits(seq, rd, upto):
    last = {}
    for i, (key, _) in enumerate(rd): last[key] = i
    w = {}; cur = 99
    for i, (f, c, t) in enumerate(seq[:upto]):
        n = len(rd) - 1 - max(last[('w', t, c)], last[('x', f+t)])
        n = min(n, 15)
        if n < cur: w[i] = n; cur = n
    return w
SEQ = order(A.order)
def step(cur, rd_cur, rd, pre=None):
    waits = need_waits(SEQ, rd_cur, A.bar)
    n = 80
    slots = {}
    span = A.rdend - A.bar + 1
    for k in range(32):
        g = A.bar + (k * span) // 32
        slots.setdefault(g, []).append(rd[k][1])
    for g in range(n):
        if g in waits: e(f"s_waitcnt lgkmcnt({waits[g]})")
        if g == A.bar - 10: stamp_issue()
        if g == A.bar:
            e("s_waitcnt lgkmcnt(0)")
            e("s_barrier")
            stamp_commit()
        f, c, t = SEQ[g]
        e(mf(cur, f, c, t))
        if pre and 12 <= g < 12 + len(pre): e(pre[g-12])
        for r in slots.get(g, []): e(r)

e("s_barrier")
stamp_now(1)
rdA = reads_for(0, 0, 0, SEQ)
rdB = reads_for(1, 1, 1, SEQ)
for r in rdA: e(r[1])
out.append(".p2align 6")
lab("L_loop")
WADV = [f"s_add_u32 s{S_WC}, s{S_WC}, 1", f"s_cmp_eq_u32 s{S_WC}, 3", f"s_cselect_b32 s{S_DW}, s{S_WM2}, s{S_WP}", f"s_cselect_b32 s{S_WC}, 0, s{S_WC}",
        f"v_add_u32 v{VWF}, s{S_DW}, v{VWF}", f"v_add_u32 v{VWG}, s{S_DW}, v{VWG}"]
step(0, rdA, rdB, pre=WADV)
step(1, rdB, rdA, pre=WADV + [f"v_add_u32 v{VXB}, s{S_DX}, v{VXB}", f"s_sub_u32 s{S_DX}, 0, s{S_DX}", f"s_add_u32 s{S_IT}, s{S_IT}, 1"])
e(f"s_cmp_lt_u32 s{S_IT}, 3")
e("s_cbranch_scc1 L_loop")

def store_ops(f, Q):
    l = []
    l.append(("s_nop 1", 8, ''))
    l.append((f"v_permlane16_swap_b32 v{Q}, v{Q+2}", 4, ''))
    l.append((f"v_permlane16_swap_b32 v{Q+1}, v{Q+3}", 4, ''))
    vo = [VO0, VO0, VO0, VO2][f >> 1]
    o = (f & ~1) * 1024
    if o < 4096: l.append((f"buffer_store_dwordx4 v[{Q}:{Q+3}], v{vo}, s[{SO}:{SO+3}], 0 offen offset:{o} {A.store}", 4, ''))
    else: l.append((f"buffer_store_dwordx4 v[{Q}:{Q+3}], v{vo}, s[{SO}:{SO+3}], s{S_IT} offen offset:{o-4096} {A.store}", 4, ''))
    return l
def epi10(f, pk=False):
    F = areg(f, 0); G = areg(f, 1)
    P = areg(f & ~1, 0) + 2*(f & 1)
    l = []
    if not pk:
        for r in range(4): l.append((f"v_mul_f32 v{TT+r}, s{S_C1}, v{F+r}", 4, 'F'))
        for r in range(4): l.append((f"v_mul_f32 v{G+r}, s{S_C2}, v{G+r}", 4, 'G'))
    else:
        for r in (0, 2): l.append((f"v_pk_mul_f32 v[{TT+r}:{TT+r+1}], v[{F+r}:{F+r+1}], s[{S_P1}:{S_P1+1}]", 4, 'F'))
        for r in (0, 2): l.append((f"v_pk_mul_f32 v[{G+r}:{G+r+1}], v[{G+r}:{G+r+1}], s[{S_P2}:{S_P2+1}]", 4, 'G'))
    for r in range(4): l.append((f"v_exp_f32 v{TT+r}, -abs(v{TT+r})", 8, ''))
    for r in range(4): l.append((f"v_exp_f32 v{G+r}, v{G+r}", 8, ''))
    if not pk:
        for r in range(4): l.append((f"v_add_f32 v{TU+r}, 1.0, v{TT+r}", 4, ''))
        for r in range(4): l.append((f"v_fma_f32 v{TU+r}, v{TU+r}, v{G+r}, v{TU+r}", 4, ''))
        for r in range(4): l.append((f"v_sub_f32 v{G+r}, 1.0, v{TT+r}", 4, ''))
    else:
        for r in (0, 2): l.append((f"v_pk_add_f32 v[{TU+r}:{TU+r+1}], v[{TT+r}:{TT+r+1}], s[{S_ONE}:{S_ONE+1}]", 4, ''))
        for r in (0, 2): l.append((f"v_pk_fma_f32 v[{TU+r}:{TU+r+1}], v[{TU+r}:{TU+r+1}], v[{G+r}:{G+r+1}], v[{TU+r}:{TU+r+1}]", 4, ''))
        for r in (0, 2): l.append((f"v_pk_add_f32 v[{G+r}:{G+r+1}], v[{TT+r}:{TT+r+1}], s[{S_ONE}:{S_ONE+1}] neg_lo:[1,0] neg_hi:[1,0]", 4, ''))
    for r in range(4): l.append((f"v_rcp_f32 v{TU+r}, v{TU+r}", 8, ''))
    for r in range(4): l.append((f"v_bfi_b32 v{G+r}, s{S_MASK}, v{G+r}, v{F+r}", 4, ''))
    if not pk:
        for r in range(4): l.append((f"v_mul_f32 v{G+r}, v{G+r}, v{TU+r}", 4, ''))
    else:
        for r in (0, 2): l.append((f"v_pk_mul_f32 v[{G+r}:{G+r+1}], v[{G+r}:{G+r+1}], v[{TU+r}:{TU+r+1}]", 4, ''))
    l.append((f"v_cvt_pk_bf16_f32 v{P}, v{G}, v{G+1}", 4, ''))
    l.append((f"v_cvt_pk_bf16_f32 v{P+1}, v{G+2}, v{G+3}", 4, ''))
    if f & 1: l += store_ops(f, areg(f & ~1, 0))
    return [(t, c_, k, f) for (t, c_, k) in l]
def epi9(f):
    F = areg(f, 0); G = areg(f, 1)
    T = TT + 4*(f & 1)
    P = areg(f & ~1, 0) + 2*(f & 1)
    def grp(fmt, cost, k, pkfmt=None):
        return ('grp', [fmt(r) for r in range(4)], cost, k, [pkfmt(r) for r in (0, 2)] if pkfmt else None)
    def pr(b, r): return f"v[{b+r}:{b+r+1}]"
    gs = [
        grp(lambda r: f"v_mul_f32 v{T+r}, s{S_C1}, v{F+r}", 4, 'F', lambda r: f"v_pk_mul_f32 {pr(T,r)}, {pr(F,r)}, s[{S_P1}:{S_P1+1}]"),
        grp(lambda r: f"v_bfi_b32 v{F+r}, s{S_MASK}, 0.5, v{F+r}", 4, 'F'),
        grp(lambda r: f"v_exp_f32 v{T+r}, -abs(v{T+r})", 8, ''),
        grp(lambda r: f"v_fma_f32 v{F+r}, v{T+r}, v{F+r}, v{F+r}", 4, '', lambda r: f"v_pk_fma_f32 {pr(F,r)}, {pr(T,r)}, {pr(F,r)}, {pr(F,r)}"),
        grp(lambda r: f"v_mul_f32 v{G+r}, s{S_C2}, v{G+r}", 4, 'G', lambda r: f"v_pk_mul_f32 {pr(G,r)}, {pr(G,r)}, s[{S_P2}:{S_P2+1}]"),
        grp(lambda r: f"v_exp_f32 v{G+r}, v{G+r}", 8, ''),
        grp(lambda r: f"v_fma_f32 v{G+r}, v{F+r}, v{G+r}, v{F+r}", 4, '', lambda r: f"v_pk_fma_f32 {pr(G,r)}, {pr(F,r)}, {pr(G,r)}, {pr(F,r)}"),
        grp(lambda r: f"v_rcp_f32 v{G+r}, v{G+r}", 8, ''),
        grp(lambda r: f"v_fma_f32 v{G+r}, -abs(v{F+r}), v{G+r}, v{G+r}", 4, ''),
    ]
    l = []
    for gi, (_, txts, cost, k, pks) in enumerate(gs):
        for r, t in enumerate(txts):
            l.append((t, cost, k, f, (pks[r // 2] if pks and r % 2 == 0 else None)))
    l.append((f"v_cvt_pk_bf16_f32 v{P}, v{G}, v{G+1}", 4, '', f, None))
    l.append((f"v_cvt_pk_bf16_f32 v{P+1}, v{G+2}, v{G+3}", 4, '', f, None))
    if f & 1: l += [(t, c_, k, f, None) for (t, c_, k) in store_ops(f, areg(f & ~1, 0))]
    return l

L = A.lag
gl = [(f, 0) for f in range(L+1)]
for f in range(8):
    gl.append((f, 1))
    if f + L + 1 < 8: gl.append((f + L + 1, 0))
seqT = order('a' if A.tord == 'a' else 'A')
rd7 = reads_for(1, 1, 1, seqT)
last7 = {}
for i, (key, _) in enumerate(rd7): last7[key] = i
stamp_issue()
e("s_waitcnt lgkmcnt(0)")
e(f"v_add_u32 v{VWF}, s{S_WP}, v{VWF}"); e(f"v_add_u32 v{VWG}, s{S_WP}, v{VWG}")
e("s_barrier")
stamp_commit()
e(f"s_movk_i32 s{S_IT}, 4096")
ms = []
for (f, s) in gl:
    if A.tord == 'a':
        for c in range(2):
            for t in range(5): ms.append((s, f, c, t))
    else:
        for t in range(5):
            for c in range(2): ms.append((s, f, c, t))
issued = 0; done = -1
pend = []
wrote = {}
fin = set()
nxt = 0
def states_since(pos):
    n = 0
    for l in out[pos+1:]:
        m = re.match(r"\s*s_nop (\d+)", l)
        n += (int(m.group(1)) + 1) if m else 1
    return n
def emit_epi(op, txt=None):
    k, f = op[2], op[3]
    if k:
        d = states_since(wrote[(f, 0 if k == 'F' else 1)])
        if d < 8: e(f"s_nop {8-d-1}")
    tx = txt or op[0]
    if 's' in A.dbg and ('buffer_store' in tx or 'permlane' in tx): return
    if 'p' in A.dbg and ('permlane' in tx): return
    if 't' in A.dbg and ('v_exp' in tx or 'v_rcp' in tx): tx = "v_mov_b32 v254, v255"
    if 'n' in A.dbg and not ('v_exp' in tx or 'v_rcp' in tx): tx = "v_mov_b32 v254, v255"
    if 'm' in A.dbg: tx = "v_mov_b32 v254, v255"
    e(tx)
def ready(op):
    k, f = op[2], op[3]
    if not k: return True
    c = 0 if k == 'F' else 1
    return (f, c) in fin and states_since(wrote[(f, c)]) >= 8
def need_of(f, c, t): return max(last7[('w', t, c)], last7[('x', f+t)])
for g, (s, f, c, t) in enumerate(ms):
    if s == 1:
        need = need_of(f, c, t)
        assert need < issued, (g, need, issued)
        if need > done:
            la = need
            for (s2, f2, c2, t2) in ms[g+1:g+3]:
                if s2 == 1 and need_of(f2, c2, t2) < issued: la = max(la, need_of(f2, c2, t2))
            n = min(issued - 1 - la, 15)
            e(f"s_waitcnt lgkmcnt({n})"); done = issued - 1 - n
    e(mf(s, f, c, t))
    wrote[(f, c)] = len(out) - 1
    if s == 1 and t == 4: fin.add((f, c))
    k = 0
    while issued < 32 and k < (2 if issued < 25 else 1):
        e(rd7[issued][1]); issued += 1; k += 1
    quota = A.quota
    while quota > 0:
        if not pend:
            if nxt < 8 and (nxt, 0) in fin and (A.epi == 9 or (nxt, 1) in fin):
                pend = epi9(nxt) if A.epi == 9 else epi10(nxt); nxt += 1
            else: break
        if pend[0][1] > quota or not ready(pend[0]): break
        op = pend.pop(0); emit_epi(op); quota -= op[1]
stamp_issue()
if A.epi == 9:
    rest = list(pend)
    for ff in range(nxt, 8): rest += epi9(ff)
    i = 0
    while i < len(rest):
        op = rest[i]
        if A.pk and op[4]:
            emit_epi(op, op[4]); i += 2
        else:
            emit_epi(op); i += 1
else:
    for op in pend: emit_epi(op)
    for ff in range(nxt, 8):
        for op in epi10(ff, A.pk): emit_epi(op)
if DIAG:
    e("s_waitcnt lgkmcnt(0)"); stamp_commit(10)
    stamp_now(11)
    e("s_waitcnt vmcnt(0)")
    lab("L_diag")
    e("s_load_dwordx2 s[58:59], s[0:1], 32")
    e("s_waitcnt vmcnt(0) lgkmcnt(0)")
    stamp_now(12)
    e("s_barrier")
    e(f"v_mbcnt_lo_u32_b32 v0, -1, 0")
    e(f"v_mbcnt_hi_u32_b32 v0, -1, v0")
    e("s_mov_b32 s52, s58"); e("s_mov_b32 s53, s59"); e("s_mov_b32 s54, 0x100000"); e("s_mov_b32 s55, 0x20000")
    e("v_mov_b32 v1, 0")
    vals = [f"s{SC0+i}" for i in range(NST)] + [f"s{SR0+i}" for i in range(NST)]
    for i, s in enumerate(vals):
        e(f"v_mov_b32 v2, {s}")
        e(f"v_cmp_eq_u32 vcc, {i}, v0")
        e("s_nop 1")
        e("v_cndmask_b32 v1, v1, v2, vcc")
    e("s_lshl_b32 s56, s%d, 3" % (48 if A.ntx else 2))
    e("s_lshr_b32 s49, s3, 6")
    e("s_add_u32 s56, s56, s49")
    e("s_lshl_b32 s56, s56, 7")
    e("v_lshlrev_b32 v3, 2, v0")
    e("v_cmp_gt_u32 vcc, 32, v0")
    e("s_and_saveexec_b64 s[4:5], vcc")
    e("buffer_store_dword v1, v3, s[52:55], s56 offen")
    e("s_waitcnt vmcnt(0)")
lab("L_end")
e("s_endpgm")
if DIAG: ldiag()
lab("L_cend")
if A.pad: out.append(f".fill {A.pad//4}, 4, 0xbf810000")

footer = f"""
.section .rodata,"a"
.p2align 6
.amdhsa_kernel {NAME}_kernel
  .amdhsa_next_free_vgpr 256
  .amdhsa_next_free_sgpr 96
  .amdhsa_accum_offset 256
  .amdhsa_group_segment_fixed_size 0
  .amdhsa_kernarg_size 40
  .amdhsa_user_sgpr_count 2
  .amdhsa_user_sgpr_kernarg_segment_ptr 1
  .amdhsa_system_sgpr_workgroup_id_x 1
.end_amdhsa_kernel
"""

def labels(text):
    import subprocess, tempfile, os
    d = tempfile.mkdtemp()
    open(d + "/a.s", "w").write(text)
    subprocess.check_call(["clang", "-x", "assembler", "-target", "amdgcn-amd-amdhsa", "-mcpu=gfx950", "-c", d + "/a.s", "-o", d + "/a.o"])
    o = subprocess.check_output(["llvm-objdump", "-t", d + "/a.o"], text=True)
    r = {}
    for l in o.splitlines():
        p = l.split()
        if len(p) >= 5 and p[-1].startswith("L_"): r[p[-1]] = int(p[0], 16)
    return r
text = header + "\n".join(out) + "\n" + footer
lb = labels(text)
sys.stderr.write("ldend %d consumer %d loop %d end %d\n" % (lb["L_ldend"], lb["L_consumer"], lb["L_loop"], lb["L_cend"]))
if A.cw:
    need = lb["L_pc"] + 255 * A.cw + 64 - lb["L_cend"]
    if need > 0: text = text.replace("L_cend:\n", "L_cend:\n.fill %d, 4, 0xbf810000\n" % ((need + 3) // 4))
    else: sys.stderr.write("WARNING: warm range ends %d bytes before the code end\n" % (-need))
sys.stdout.write(text)
```

```python
import sys, argparse, re

ap = argparse.ArgumentParser()
ap.add_argument("--diag", action="store_true")
ap.add_argument("--loader", default="w x w b10 x b5 w b0 r w x b5 w b0 w x b5 r w b0 w b0")
ap.add_argument("--store", default="nt", help="store cache flags")
ap.add_argument("--order", default="a", help="main-step MFMA order")
ap.add_argument("--bar", type=int, default=40, help="MFMA index of the mid-step barrier")
ap.add_argument("--rdend", type=int, default=74, help="last MFMA gap carrying a read")
ap.add_argument("--lag", type=int, default=1)
ap.add_argument("--xflag", default="nt", help="cache flags on X DMA")
ap.add_argument("--wflag", default="", help="cache flags on W DMA")
ap.add_argument("--pk", type=int, default=1)
ap.add_argument("--quota", type=int, default=8)
ap.add_argument("--pad", type=int, default=0)
ap.add_argument("--cw", type=int, default=0, help="code warm stride (bytes per lane, 0=off)")
ap.add_argument("--epi", type=int, default=9)
ap.add_argument("--tord", default="a", help="tail group order: a (chain) | t")
ap.add_argument("--dbg", default="", help="diagnostic tail edits: s=no store/permlane in gaps, t=trans->mov, w=waits right after MFMA")
ap.add_argument("--pfw", default="", help="p0:n vector L2 prefetch of W phases")
ap.add_argument("--pfx", default="", help="c0:n vector L2 prefetch of X blocks")
ap.add_argument("--pfpos", default="first", help="first | op P in loader")
ap.add_argument("--rot", type=int, default=1)
ap.add_argument("--ntx", type=int, default=0, help="xor wg id with this (diagnostic remap)")
ap.add_argument("--cpf", default="", help="p0:n[:c0[:nx]] cooperative prefetch: waves<n fetch W phase p0+w, wave 3 fetches X chunks c0..")
ap.add_argument("--ts", type=int, default=0, help="tap-stream W routine (ops wN = N taps)")
ap.add_argument("--pf1", type=int, default=0, help="prefetch own tap of W1 first")
ap.add_argument("--wrot", type=int, default=0, help="tap rotation by m-tile")
ap.add_argument("--xrot", type=int, default=0, help="X instr rotation by n-tile")
A = ap.parse_args()
DIAG = A.diag

NAME = "standalone__autoregressive_conv_wavernn__speech"
XBLK = 1040
XSLOT = 20480
WBASE = 2 * XSLOT
WSLOT = 40960
LDS_BYTES = WBASE + 3 * WSLOT

out = []
def e(s): out.append("    " + s)
def lab(s): out.append(s + ":")

header = f"""; x (2,4000,256) bf16 @0, w (5,256,512) bf16 @8, out (2,4000,256) bf16 @16, debug @24, ws @32
; @launch grid=(256,1,1) block=(512,1,1) lds={LDS_BYTES}
.amdgcn_target "amdgcn-amd-amdhsa--gfx950"
.text
.globl {NAME}_kernel
.p2align 8
.type {NAME}_kernel,@function
{NAME}_kernel:
"""
SX, SW, SO = 12, 16, 20
NST = 16
SC0, SR0 = 60, 76
def stamp_issue():
    if DIAG:
        e("s_memtime s[50:51]"); e("s_memrealtime s[52:53]")
def stamp_commit(idx=None):
    if DIAG:
        if idx is None:
            e(f"s_movreld_b32 s{SC0}, s50"); e(f"s_movreld_b32 s{SR0}, s52"); e("s_add_u32 m0, m0, 1")
        else:
            e(f"s_mov_b32 s{SC0+idx}, s50"); e(f"s_mov_b32 s{SR0+idx}, s52")
def stamp_now(idx):
    if DIAG:
        stamp_issue(); e("s_waitcnt lgkmcnt(0)"); stamp_commit(idx)

if DIAG:
    e("s_memtime s[54:55]"); e("s_memrealtime s[56:57]")
e(f"s_load_dwordx2 s[{SW}:{SW+1}], s[0:1], 8")
e(f"s_load_dwordx2 s[{SX}:{SX+1}], s[0:1], 0")
e("v_readfirstlane_b32 s3, v0")
e("s_lshr_b32 s28, s2, 8")
e("s_cbranch_scc1 L_end0")
if A.ntx: e("s_mov_b32 s48, s2"); e(f"s_xor_b32 s2, s2, {A.ntx}")
e("s_bitcmp1_b32 s3, 8")
e("s_cbranch_scc1 L_consumer")

sR, sT, sRX, sRW, sB, sMX, sS, sMW, sK, sO, sC = 20, 21, 22, 23, 24, 25, 26, 27, 28, 29, 30
sTau, sWS, sT1 = 31, 36, 37
RET, PC = 32, 34
VX, VW, VXT, VW2 = 3, 5, 7, 10
e("v_lshrrev_b32 v2, 3, v0")
e("v_lshrrev_b32 v4, 4, v0")
e(f"s_and_b32 s{sR}, s2, 3")
e(f"s_lshr_b32 s{sT}, s2, 5")
e("v_bfi_b32 v4, 6, v2, v4")
if A.wrot:
    e(f"s_mul_i32 s{sTau}, s{sT}, 5")
e(f"s_lshl3_add_u32 s{sT}, s{sR}, s{sT}")
e("v_xor_b32 v4, v4, v0")
e(f"s_mul_i32 s{sT}, s{sT}, 64000")
e("v_bfi_b32 v4, 14, v4, v0")
e(f"s_addk_i32 s{sT}, 0xf000")
e("v_and_b32 v6, 7, v4")
if A.rot == 1: pass
elif A.rot == 3: e(f"s_min_u32 s{sR}, s{sR}, 2")
elif A.rot == 4: e(f"s_and_b32 s{sR}, s2, 1")
elif A.rot == 5: e(f"s_and_b32 s{sR}, s2, 2")
elif A.rot == 6: e(f"s_lshr_b32 s{sR}, s{sR}, 1")
elif A.rot == 0: e(f"s_mov_b32 s{sR}, 0")
e(f"s_lshl_b32 s{sRX}, s{sR}, 7")
e(f"s_lshl_b32 s{sRW}, s{sR}, 16")
e("v_lshrrev_b32 v7, 3, v4")
e(f"s_and_b32 s{sB}, s2, 24")
e(f"s_lshl4_add_u32 s{sRW}, s{sB}, s{sRW}")
CPF = list(map(int, A.cpf.split(':'))) if A.cpf else None
sP, sPX = 38, 39
if CPF and len(CPF) > 2:
    e(f"s_lshl_b32 s{sPX}, s{sB}, 11")
    e(f"s_add_u32 s{sPX}, s{sPX}, s{sT}")
e("v_lshlrev_b32 v7, 9, v7")
e(f"s_mov_b32 s{SX+2}, 2048000")
e("s_bitcmp1_b32 s2, 2")
e(f"s_cselect_b32 s{sB}, s{SX+2}, 0")
e(f"v_lshl_add_u32 v{VW}, v6, 4, v7")
e(f"s_lshl_b32 s{SX+3}, 1, 17")
e(f"s_lshl_b32 s{SW+3}, 1, 17")
e(f"s_lshl_b32 s{SW+2}, 5, 18")
e("v_and_b32 v1, 7, v0")
e(f"s_movk_i32 s{sK}, 16384")
e(f"s_lshl_b32 s{sWS}, 5, 13")
if CPF:
    e(f"s_lshr_b32 s{sP}, s2, 3")
    e("v_lshlrev_b32 v8, 7, v1")
    e(f"s_lshl1_add_u32 s{sP}, s{sP}, s3")
    e("v_and_b32 v9, 7, v2")
    e(f"s_add_u32 s{sP}, s{sP}, s{sRX}")
    if CPF[0]: e(f"s_add_u32 s{sP}, s{sP}, {64*CPF[0]}")
    e("v_lshl_add_u32 v8, v9, 18, v8")
    e(f"s_lshl_b32 s{sP}, s{sP}, 9")
    if A.rot == 1: e(f"s_bitset0_b32 s{sP}, 18")
    if len(CPF) > 2:
        e("v_and_b32 v9, 31, v0")
        e(f"v_lshl_add_u32 v9, v9, 9, s{sPX}")
        e("v_and_b32 v11, 32, v0")
        e("v_lshl_add_u32 v9, v11, 2, v9")
if 'P' in A.loader.split():
    e(f"s_lshr_b32 s{sP}, s2, 3")
    e("v_lshlrev_b32 v8, 7, v1")
    e(f"s_lshl1_add_u32 s{sP}, s{sP}, s{sRX}")
    e("v_lshl_add_u32 v8, v2, 18, v8")
    e(f"s_add_u32 s{sP}, s{sP}, 64")
    e(f"s_lshl_b32 s{sP}, s{sP}, 9")
e(f"v_lshl_add_u32 v1, v1, 4, s{sT}")
e(f"s_lshr_b32 s{sMX}, s3, 6")
if A.wrot:
    e(f"s_and_b32 s{sTau}, s{sTau}, -8")
    e(f"s_add_u32 s{sMW}, s{sMX}, s{sTau}")
    e(f"s_lshl_b32 s{sMW}, s{sMW}, 10")
    e(f"s_add_u32 s{sMW}, s{sMW}, s{sWS}")
    e(f"s_lshl_b32 s{sTau}, s{sTau}, 15")
else:
    e(f"s_lshl4_add_u32 s{sMW}, s3, s{sWS}")
e(f"s_mulk_i32 s{sMX}, {XBLK}")
e(f"v_lshl_add_u32 v{VX}, v2, 9, v1")
e(f"v_add_u32 v{VW2}, s{sK}, v{VW}")
ops = A.loader.split()
def emit_x():
    lab("L_x")
    if not A.xrot:
        e(f"s_mov_b32 m0, s{sMX}")
        e(f"v_mov_b32 v{VXT}, v{VX}")
        e(f"s_mov_b32 s{sC}, 3")
        lab("L_xl")
        e(f"buffer_load_dwordx4 v{VXT}, s[{SX}:{SX+3}], s{sRX} offen {A.xflag} lds")
        e(f"s_addk_i32 m0, {4*XBLK}")
        e(f"v_add_u32 v{VXT}, s{sK}, v{VXT}")
        e(f"s_sub_u32 s{sC}, s{sC}, 1")
        e("s_cbranch_scc0 L_xl")
    else:
        e(f"s_mov_b32 s{sC}, s{sNT}")
        lab("L_xl")
        e(f"s_mul_i32 s{sT1}, s{sC}, {4*XBLK}")
        e(f"v_lshl_add_u32 v{VXT}, s{sC}, 14, v{VX}")
        e(f"s_add_u32 m0, s{sT1}, s{sMX}")
        e(f"s_add_u32 s{sC}, s{sC}, 1")
        e(f"buffer_load_dwordx4 v{VXT}, s[{SX}:{SX+3}], s{sRX} offen {A.xflag} lds")
        e(f"s_and_b32 s{sC}, s{sC}, 3")
        e(f"s_cmp_lg_u32 s{sC}, s{sNT}")
        e("s_cbranch_scc1 L_xl")
        e(f"s_add_u32 m0, s{sMX}, {16*XBLK}")
        e(f"v_lshl_add_u32 v{VXT}, s{sK}, 2, v{VX}")
    e("s_bfm_b64 exec, 40, 0")
    e(f"buffer_load_dwordx4 v{VXT}, s[{SX}:{SX+3}], s{sRX} offen {A.xflag} lds")
    e("s_mov_b64 exec, -1")
    e(f"s_xor_b32 s{sMX}, s{sMX}, {XSLOT}")
    e(f"s_addk_i32 s{sRX}, 128")
    e(f"s_bitset0_b32 s{sRX}, 9")
    e(f"s_setpc_b64 s[{RET}:{RET+1}]")
def emit_w_ts(first):
    lab("L_w")
    e(f"s_mov_b32 m0, s{sMW}")
    if first: e("s_waitcnt lgkmcnt(0)")
    lab("L_wl")
    e(f"buffer_load_dwordx4 v{VW}, s[{SW}:{SW+3}], s{sO} offen {A.wflag} lds")
    e("s_addk_i32 m0, 4096")
    e(f"s_lshl4_add_u32 s{sT1}, s{sK}, s{sO}")
    e(f"buffer_load_dwordx4 v{VW2}, s[{SW}:{SW+3}], s{sO} offen {A.wflag} lds")
    e("s_addk_i32 m0, 4096")
    e(f"s_sub_u32 s{sO}, s{sT1}, s{SW+2}")
    e(f"s_cselect_b32 s{sO}, s{sT1}, s{sO}")
    e(f"s_cselect_b32 s{sT1}, 0, s{sWS}")
    e(f"s_sub_u32 m0, m0, s{sT1}")
    e(f"s_cmp_lg_u32 s{sO}, s{sS}")
    e("s_cbranch_scc1 L_wn")
    e(f"s_add_u32 m0, m0, s{sWS}")
    e(f"s_lshl1_add_u32 s{sRW}, s{sK}, s{sRW}")
    e(f"s_bitset0_b32 s{sRW}, 18")
    e(f"s_add_u32 s{sS}, s{sRW}, s{sTau}")
    e(f"s_mov_b32 s{sO}, s{sS}")
    lab("L_wn")
    e(f"s_sub_u32 s{sC}, s{sC}, 1")
    e("s_cbranch_scc0 L_wl")
    e(f"s_mov_b32 s{sMW}, m0")
    e(f"s_setpc_b64 s[{RET}:{RET+1}]")
sNT = 40
if A.xrot: e(f"s_bfe_u32 s{sNT}, s2, 0x20003")
if A.ts:
    assert A.wrot
    e(f"s_add_u32 s{sS}, s{sRW}, s{sTau}")
    e(f"s_mov_b32 s{sO}, s{sS}")
    e(f"s_getpc_b64 s[{RET}:{RET+1}]")
    lab("L_pc2")
    e(f"s_add_u32 s{RET}, s{RET}, L_sched-L_pc2")
    e(f"s_addc_u32 s{RET+1}, s{RET+1}, 0")
    if ops[0][0] == 'w':
        e(f"s_mov_b32 s{sC}, {int(ops[0][1:] or 5)-1}")
        emit_w_ts(True); emit_x()
    else:
        e("s_waitcnt lgkmcnt(0)")
        e(f"s_add_u32 s{SX}, s{SX}, s{sB}")
        e(f"s_addc_u32 s{SX+1}, s{SX+1}, 0")
        emit_x(); emit_w_ts(False)
else:
    assert ops[0] == 'x'
    e(f"s_getpc_b64 s[{RET}:{RET+1}]")
    lab("L_pc2")
    e(f"s_add_u32 s{RET}, s{RET}, L_sched-L_pc2")
    e(f"s_addc_u32 s{RET+1}, s{RET+1}, 0")
    if A.pf1:
        if A.wrot: e(f"s_add_u32 s{sO}, s{sRW}, s{sTau}")
        e(f"s_lshl1_add_u32 s{sO}, s{sK}, s{sO if A.wrot else sRW}")
    e("s_waitcnt lgkmcnt(0)")
    if A.pf1:
        e(f"buffer_load_dword v8, v{VW}, s[{SW}:{SW+3}], s{sO} offen")
        e(f"buffer_load_dword v9, v{VW2}, s[{SW}:{SW+3}], s{sO} offen")
    e(f"s_add_u32 s{SX}, s{SX}, s{sB}")
    e(f"s_addc_u32 s{SX+1}, s{SX+1}, 0")
    if CPF:
        n = CPF[1]
        if n < 4:
            e(f"s_cmpk_ge_u32 s3, {64*n}")
            e("s_cbranch_scc1 L_pfx")
        e(f"buffer_load_dword v12, v8, s[{SW}:{SW+3}], s{sP} offen")
        if len(CPF) > 2:
            e("s_branch L_x")
            lab("L_pfx")
            if n < 3:
                e(f"s_cmpk_lt_u32 s3, 192")
                e("s_cbranch_scc1 L_x")
            if len(CPF) > 3 and CPF[3] == 1: e("s_bfm_b64 exec, 32, 0")
            e(f"buffer_load_dword v12, v9, s[{SX}:{SX+3}], s{sRX} offen offset:{128*CPF[2]} {A.xflag}")
            if len(CPF) > 3 and CPF[3] == 1: e("s_mov_b64 exec, -1")
        else:
            lab("L_pfx")
    emit_x()
    lab("L_w")
    e(f"s_mov_b32 m0, s{sMW}")
    if A.wrot:
        e(f"s_add_u32 s{sS}, s{sRW}, s{sTau}")
        e(f"s_mov_b32 s{sO}, s{sS}")
    else:
        e(f"s_mov_b32 s{sO}, s{sRW}")
    lab("L_wl")
    e(f"buffer_load_dwordx4 v{VW}, s[{SW}:{SW+3}], s{sO} offen {A.wflag} lds")
    e("s_addk_i32 m0, 4096")
    if not A.wrot:
        e("s_nop 0")
        e(f"buffer_load_dwordx4 v{VW2}, s[{SW}:{SW+3}], s{sO} offen {A.wflag} lds")
        e("s_addk_i32 m0, 4096")
        e(f"s_lshl4_add_u32 s{sO}, s{sK}, s{sO}")
        e(f"s_cmp_lt_u32 s{sO}, s{SW+2}")
        e("s_cbranch_scc1 L_wl")
    else:
        e(f"s_lshl4_add_u32 s{sT1}, s{sK}, s{sO}")
        e(f"buffer_load_dwordx4 v{VW2}, s[{SW}:{SW+3}], s{sO} offen {A.wflag} lds")
        e("s_addk_i32 m0, 4096")
        e(f"s_sub_u32 s{sO}, s{sT1}, s{SW+2}")
        e(f"s_cselect_b32 s{sO}, s{sT1}, s{sO}")
        e(f"s_cselect_b32 s{sT1}, 0, s{sWS}")
        e(f"s_sub_u32 m0, m0, s{sT1}")
        e(f"s_cmp_lg_u32 s{sO}, s{sS}")
        e("s_cbranch_scc1 L_wl")
    e(f"s_add_u32 s{sMW}, s{sMW}, s{sWS}")
    e(f"s_lshl1_add_u32 s{sRW}, s{sK}, s{sRW}")
    e(f"s_bitset0_b32 s{sRW}, 18")
    e(f"s_setpc_b64 s[{RET}:{RET+1}]")
lab("L_sched")
if A.ts and ops[0][0] == 'w':
    e(f"s_add_u32 s{SX}, s{SX}, s{sB}")
    e(f"s_addc_u32 s{SX+1}, s{SX+1}, 0")
used = {0, 12}
late = []
cur_out = out
def sched_ops(ops):
    for op in ops:
        k, a = op[0], op[1:]
        if k == 'x': e(f"s_call_b64 s[{RET}:{RET+1}], L_x")
        elif k == 'w':
            if A.ts: e(f"s_mov_b32 s{sC}, {int(a or 5)-1}")
            e(f"s_call_b64 s[{RET}:{RET+1}], L_w")
        elif k == 'r': e(f"s_sub_u32 s{sMW}, s{sMW}, {3*WSLOT}")
        elif k == 'b':
            e(f"s_waitcnt vmcnt({int(a)})"); e("s_barrier")
        elif k == 'B': e("s_barrier")
        elif k == 'P': e(f"buffer_load_dword v12, v8, s[{SW}:{SW+3}], s{sP} offen")
        elif k == 'v': e(f"s_waitcnt vmcnt({int(a)})")
        elif k == 's': stamp_now(int(a)); used.add(int(a))
        else: raise ValueError(op)
def sched_end():
    if DIAG: e("s_branch L_ldiag")
    else: e("s_endpgm")
if 'L' in ops:
    i = ops.index('L')
    sched_ops(ops[1:i]); e("s_branch L_late"); LATE = ops[i+1:]
else:
    sched_ops(ops[1:]); sched_end(); LATE = None
lab("L_end0")
e("s_endpgm")
lab("L_ldend")
def ldiag():
    lab("L_ldiag")
    e(f"s_mov_b32 s{SC0}, s54"); e(f"s_mov_b32 s{SR0}, s56")
    for i in range(NST):
        if i not in used: e(f"s_mov_b32 s{SC0+i}, 0"); e(f"s_mov_b32 s{SR0+i}, 0")
    e("s_branch L_diag")

out.append(".p2align 6")
lab("L_consumer")
S_T0, S_E0B, S_WAVE, S_BATCH = 24, 25, 26, 27
S_TMP = 28
S_IT = 36
S_DX, S_DW = 37, 38
S_C1, S_C2, S_MASK = 39, 40, 41
S_WP, S_WM2, S_WC = 42, 43, 44
XR = [0, 48]
WR = [96, 136]
ACC = 176
VXB, VWF, VWG, VO0, VO1, VO2 = 240, 241, 242, 243, 244, 245
TT, TU = 246, 250
S_WM, S_WN = S_TMP, S_TMP + 1
e("s_load_dwordx2 s[8:9], s[0:1], 16")
if LATE is not None:
    e("s_branch L_cons2")
    lab("L_late")
    sched_ops(LATE); sched_end()
    lab("L_cons2")
if DIAG:
    for i in range(NST): e(f"s_mov_b32 s{SC0+i}, 0"); e(f"s_mov_b32 s{SR0+i}, 0")
e("v_and_b32 v0, 63, v0")
e(f"s_bfe_u32 s{S_WN}, s3, 0x20006")
e(f"s_and_b32 s{S_T0}, s2, 3")
e(f"s_lshr_b32 s{S_TMP+2}, s2, 5")
e(f"s_lshl3_add_u32 s{S_T0}, s{S_T0}, s{S_TMP+2}")
e(f"s_mul_i32 s{S_T0}, s{S_T0}, 125")
e(f"s_and_b32 s{S_E0B}, s2, 24")
e(f"s_lshl_b32 s{S_E0B}, s{S_E0B}, 4")
e(f"s_mov_b32 s{SO+2}, 2048000")
e("s_bitcmp1_b32 s2, 2")
e(f"s_cselect_b32 s{S_BATCH}, s{SO+2}, 0")
e(f"s_mov_b32 s{SO+3}, 0x20000")
e("v_and_b32 v2, 15, v0")
e("v_lshrrev_b32 v3, 4, v0")
e("v_lshrrev_b32 v4, 1, v2")
e("v_and_b32 v5, 1, v2")
e(f"v_mul_u32_u24 v6, {2*XBLK}, v4")
e("v_lshl_add_u32 v6, v5, 7, v6")
e(f"v_lshl_add_u32 v{VXB}, v3, 4, v6")
e("v_bfe_u32 v6, v0, 2, 2")
e("v_lshl_add_u32 v7, v3, 3, v6")
e("v_lshlrev_b32 v7, 8, v7")
e(f"v_xor_b32 v8, s{S_WN}, v6")
e("v_lshl_add_u32 v7, v8, 5, v7")
e("v_and_b32 v9, 1, v3")
e("v_lshl_add_u32 v7, v9, 7, v7")
e("v_and_b32 v8, 3, v0")
e("v_lshl_add_u32 v7, v8, 3, v7")
e(f"v_add_u32 v{VWF}, {WBASE}, v7")
e("v_xor_b32 v7, 0x80, v7")
e(f"v_add_u32 v{VWG}, {WBASE}, v7")
e("v_lshl_add_u32 v6, v4, 4, v5")
e("v_lshl_add_u32 v6, v9, 1, v6")
e("v_cmp_lt_u32 vcc, 0x70, v6")
e(f"v_add_u32 v6, s{S_T0}, v6")
e("v_lshlrev_b32 v6, 9, v6")
e("v_lshrrev_b32 v8, 1, v3")
e("v_lshl_add_u32 v6, v8, 4, v6")
e(f"s_lshl_b32 s{S_TMP+3}, s{S_WN}, 5")
e(f"s_add_u32 s{S_TMP+3}, s{S_TMP+3}, s{S_E0B}")
e(f"v_add_u32 v{VO0}, s{S_TMP+3}, v6")
e("v_bfrev_b32 v7, 1")
e(f"s_mov_b32 s{S_DX}, {XSLOT}")
e(f"s_mov_b32 s{S_WP}, {WSLOT}")
e(f"s_mov_b32 s{S_WM2}, {-2*WSLOT & 0xffffffff}")
e(f"s_mov_b32 s{S_WC}, 0")
e(f"v_cndmask_b32 v{VO2}, v{VO0}, v7, vcc")
for r in range(0, 64, 2):
    e(f"v_mov_b64 v[{ACC+r}:{ACC+r+1}], 0")
e(f"s_mov_b32 s{S_C1}, 0x4038aa3b")
e(f"s_mov_b32 s{S_C2}, 0xbfb8aa3b")
e(f"s_mov_b32 s{S_MASK}, 0x7fffffff")
e(f"s_mov_b32 s{S_IT}, 0")
S_P1, S_P2, S_ONE = 30, 32, 34
for i, v in enumerate([f"s{S_C1}", f"s{S_C1}", f"s{S_C2}", f"s{S_C2}", "1.0", "1.0"]): e(f"s_mov_b32 s{30+i}, {v}")
e("s_waitcnt lgkmcnt(0)")
if DIAG:
    e(f"s_mov_b32 s{SC0}, s54"); e(f"s_mov_b32 s{SR0}, s56"); e("s_mov_b32 m0, 2")
e(f"s_add_u32 s{SO}, s8, s{S_BATCH}")
e(f"s_addc_u32 s{SO+1}, s9, 0")

def xreg(s, f): return XR[s] + 4*f
def wreg(s, t, c): return WR[s] + 8*t + 4*c
def areg(f, c): return ACC + 8*f + 4*c
def rd_x(s, f, ks):
    r = xreg(s, f)
    return (('x', f), f"ds_read_b128 v[{r}:{r+3}], v{VXB} offset:{(f>>2)*XBLK + (f&3)*256 + ks*64}")
def rd_w(s, t, c, u, wslot):
    r = wreg(s, t, c) + 2*u
    return (('w', t, c), f"ds_read_b64_tr_b16 v[{r}:{r+1}], v{VWG if c else VWF} offset:{t*8192 + u*1024}")
def mf(s, f, c, t):
    a = areg(f, c); w = wreg(s, t, c); x = xreg(s, f+t)
    return f"v_mfma_f32_16x16x32_bf16 v[{a}:{a+3}], v[{w}:{w+3}], v[{x}:{x+3}], v[{a}:{a+3}]"
def order(kind):
    if kind == 't': return [(f, c, t) for t in range(5) for c in range(2) for f in range(8)]
    if kind == 'a': return [(f, c, t) for f in range(8) for c in range(2) for t in range(5)]
    if kind == 'A': return [(f, c, t) for f in range(8) for t in range(5) for c in range(2)]
    raise ValueError(kind)
def reads_for(s, ks, wslot, seq):
    l = []; seen = set()
    for (f, c, t) in seq:
        if ('w', t, c) not in seen:
            seen.add(('w', t, c)); l += [rd_w(s, t, c, 0, wslot), rd_w(s, t, c, 1, wslot)]
        if ('x', f+t) not in seen:
            seen.add(('x', f+t)); l.append(rd_x(s, f+t, ks))
    assert len(l) == 32
    return l
def need_waits(seq, rd, upto):
    last = {}
    for i, (key, _) in enumerate(rd): last[key] = i
    w = {}; cur = 99
    for i, (f, c, t) in enumerate(seq[:upto]):
        n = len(rd) - 1 - max(last[('w', t, c)], last[('x', f+t)])
        n = min(n, 15)
        if n < cur: w[i] = n; cur = n
    return w
SEQ = order(A.order)
def step(cur, rd_cur, rd, pre=None):
    waits = need_waits(SEQ, rd_cur, A.bar)
    n = 80
    slots = {}
    span = A.rdend - A.bar + 1
    for k in range(32):
        g = A.bar + (k * span) // 32
        slots.setdefault(g, []).append(rd[k][1])
    for g in range(n):
        if g in waits: e(f"s_waitcnt lgkmcnt({waits[g]})")
        if g == A.bar - 10: stamp_issue()
        if g == A.bar:
            e("s_waitcnt lgkmcnt(0)")
            e("s_barrier")
            stamp_commit()
        f, c, t = SEQ[g]
        e(mf(cur, f, c, t))
        if pre and 12 <= g < 12 + len(pre): e(pre[g-12])
        for r in slots.get(g, []): e(r)

e("s_barrier")
stamp_now(1)
rdA = reads_for(0, 0, 0, SEQ)
rdB = reads_for(1, 1, 1, SEQ)
for r in rdA: e(r[1])
out.append(".p2align 6")
lab("L_loop")
WADV = [f"s_add_u32 s{S_WC}, s{S_WC}, 1", f"s_cmp_eq_u32 s{S_WC}, 3", f"s_cselect_b32 s{S_DW}, s{S_WM2}, s{S_WP}", f"s_cselect_b32 s{S_WC}, 0, s{S_WC}",
        f"v_add_u32 v{VWF}, s{S_DW}, v{VWF}", f"v_add_u32 v{VWG}, s{S_DW}, v{VWG}"]
step(0, rdA, rdB, pre=WADV)
step(1, rdB, rdA, pre=WADV + [f"v_add_u32 v{VXB}, s{S_DX}, v{VXB}", f"s_sub_u32 s{S_DX}, 0, s{S_DX}", f"s_add_u32 s{S_IT}, s{S_IT}, 1"])
e(f"s_cmp_lt_u32 s{S_IT}, 3")
e("s_cbranch_scc1 L_loop")

def store_ops(f, Q):
    l = []
    l.append(("s_nop 1", 8, ''))
    l.append((f"v_permlane16_swap_b32 v{Q}, v{Q+2}", 4, ''))
    l.append((f"v_permlane16_swap_b32 v{Q+1}, v{Q+3}", 4, ''))
    vo = [VO0, VO0, VO0, VO2][f >> 1]
    o = (f & ~1) * 1024
    if o < 4096: l.append((f"buffer_store_dwordx4 v[{Q}:{Q+3}], v{vo}, s[{SO}:{SO+3}], 0 offen offset:{o} {A.store}", 4, ''))
    else: l.append((f"buffer_store_dwordx4 v[{Q}:{Q+3}], v{vo}, s[{SO}:{SO+3}], s{S_IT} offen offset:{o-4096} {A.store}", 4, ''))
    return l
def epi10(f, pk=False):
    F = areg(f, 0); G = areg(f, 1)
    P = areg(f & ~1, 0) + 2*(f & 1)
    l = []
    if not pk:
        for r in range(4): l.append((f"v_mul_f32 v{TT+r}, s{S_C1}, v{F+r}", 4, 'F'))
        for r in range(4): l.append((f"v_mul_f32 v{G+r}, s{S_C2}, v{G+r}", 4, 'G'))
    else:
        for r in (0, 2): l.append((f"v_pk_mul_f32 v[{TT+r}:{TT+r+1}], v[{F+r}:{F+r+1}], s[{S_P1}:{S_P1+1}]", 4, 'F'))
        for r in (0, 2): l.append((f"v_pk_mul_f32 v[{G+r}:{G+r+1}], v[{G+r}:{G+r+1}], s[{S_P2}:{S_P2+1}]", 4, 'G'))
    for r in range(4): l.append((f"v_exp_f32 v{TT+r}, -abs(v{TT+r})", 8, ''))
    for r in range(4): l.append((f"v_exp_f32 v{G+r}, v{G+r}", 8, ''))
    if not pk:
        for r in range(4): l.append((f"v_add_f32 v{TU+r}, 1.0, v{TT+r}", 4, ''))
        for r in range(4): l.append((f"v_fma_f32 v{TU+r}, v{TU+r}, v{G+r}, v{TU+r}", 4, ''))
        for r in range(4): l.append((f"v_sub_f32 v{G+r}, 1.0, v{TT+r}", 4, ''))
    else:
        for r in (0, 2): l.append((f"v_pk_add_f32 v[{TU+r}:{TU+r+1}], v[{TT+r}:{TT+r+1}], s[{S_ONE}:{S_ONE+1}]", 4, ''))
        for r in (0, 2): l.append((f"v_pk_fma_f32 v[{TU+r}:{TU+r+1}], v[{TU+r}:{TU+r+1}], v[{G+r}:{G+r+1}], v[{TU+r}:{TU+r+1}]", 4, ''))
        for r in (0, 2): l.append((f"v_pk_add_f32 v[{G+r}:{G+r+1}], v[{TT+r}:{TT+r+1}], s[{S_ONE}:{S_ONE+1}] neg_lo:[1,0] neg_hi:[1,0]", 4, ''))
    for r in range(4): l.append((f"v_rcp_f32 v{TU+r}, v{TU+r}", 8, ''))
    for r in range(4): l.append((f"v_bfi_b32 v{G+r}, s{S_MASK}, v{G+r}, v{F+r}", 4, ''))
    if not pk:
        for r in range(4): l.append((f"v_mul_f32 v{G+r}, v{G+r}, v{TU+r}", 4, ''))
    else:
        for r in (0, 2): l.append((f"v_pk_mul_f32 v[{G+r}:{G+r+1}], v[{G+r}:{G+r+1}], v[{TU+r}:{TU+r+1}]", 4, ''))
    l.append((f"v_cvt_pk_bf16_f32 v{P}, v{G}, v{G+1}", 4, ''))
    l.append((f"v_cvt_pk_bf16_f32 v{P+1}, v{G+2}, v{G+3}", 4, ''))
    if f & 1: l += store_ops(f, areg(f & ~1, 0))
    return [(t, c_, k, f) for (t, c_, k) in l]
def epi9(f):
    F = areg(f, 0); G = areg(f, 1)
    T = TT + 4*(f & 1)
    P = areg(f & ~1, 0) + 2*(f & 1)
    def grp(fmt, cost, k, pkfmt=None):
        return ('grp', [fmt(r) for r in range(4)], cost, k, [pkfmt(r) for r in (0, 2)] if pkfmt else None)
    def pr(b, r): return f"v[{b+r}:{b+r+1}]"
    gs = [
        grp(lambda r: f"v_mul_f32 v{T+r}, s{S_C1}, v{F+r}", 4, 'F', lambda r: f"v_pk_mul_f32 {pr(T,r)}, {pr(F,r)}, s[{S_P1}:{S_P1+1}]"),
        grp(lambda r: f"v_bfi_b32 v{F+r}, s{S_MASK}, 0.5, v{F+r}", 4, 'F'),
        grp(lambda r: f"v_exp_f32 v{T+r}, -abs(v{T+r})", 8, ''),
        grp(lambda r: f"v_fma_f32 v{F+r}, v{T+r}, v{F+r}, v{F+r}", 4, '', lambda r: f"v_pk_fma_f32 {pr(F,r)}, {pr(T,r)}, {pr(F,r)}, {pr(F,r)}"),
        grp(lambda r: f"v_mul_f32 v{G+r}, s{S_C2}, v{G+r}", 4, 'G', lambda r: f"v_pk_mul_f32 {pr(G,r)}, {pr(G,r)}, s[{S_P2}:{S_P2+1}]"),
        grp(lambda r: f"v_exp_f32 v{G+r}, v{G+r}", 8, ''),
        grp(lambda r: f"v_fma_f32 v{G+r}, v{F+r}, v{G+r}, v{F+r}", 4, '', lambda r: f"v_pk_fma_f32 {pr(G,r)}, {pr(F,r)}, {pr(G,r)}, {pr(F,r)}"),
        grp(lambda r: f"v_rcp_f32 v{G+r}, v{G+r}", 8, ''),
        grp(lambda r: f"v_fma_f32 v{G+r}, -abs(v{F+r}), v{G+r}, v{G+r}", 4, ''),
    ]
    l = []
    for gi, (_, txts, cost, k, pks) in enumerate(gs):
        for r, t in enumerate(txts):
            l.append((t, cost, k, f, (pks[r // 2] if pks and r % 2 == 0 else None)))
    l.append((f"v_cvt_pk_bf16_f32 v{P}, v{G}, v{G+1}", 4, '', f, None))
    l.append((f"v_cvt_pk_bf16_f32 v{P+1}, v{G+2}, v{G+3}", 4, '', f, None))
    if f & 1: l += [(t, c_, k, f, None) for (t, c_, k) in store_ops(f, areg(f & ~1, 0))]
    return l

L = A.lag
gl = [(f, 0) for f in range(L+1)]
for f in range(8):
    gl.append((f, 1))
    if f + L + 1 < 8: gl.append((f + L + 1, 0))
seqT = order('a' if A.tord == 'a' else 'A')
rd7 = reads_for(1, 1, 1, seqT)
last7 = {}
for i, (key, _) in enumerate(rd7): last7[key] = i
stamp_issue()
e("s_waitcnt lgkmcnt(0)")
e(f"v_add_u32 v{VWF}, s{S_WP}, v{VWF}"); e(f"v_add_u32 v{VWG}, s{S_WP}, v{VWG}")
e("s_barrier")
stamp_commit()
e(f"s_movk_i32 s{S_IT}, 4096")
ms = []
for (f, s) in gl:
    if A.tord == 'a':
        for c in range(2):
            for t in range(5): ms.append((s, f, c, t))
    else:
        for t in range(5):
            for c in range(2): ms.append((s, f, c, t))
issued = 0; done = -1
pend = []
wrote = {}
fin = set()
nxt = 0
def states_since(pos):
    n = 0
    for l in out[pos+1:]:
        m = re.match(r"\s*s_nop (\d+)", l)
        n += (int(m.group(1)) + 1) if m else 1
    return n
def emit_epi(op, txt=None):
    k, f = op[2], op[3]
    if k:
        d = states_since(wrote[(f, 0 if k == 'F' else 1)])
        if d < 8: e(f"s_nop {8-d-1}")
    tx = txt or op[0]
    if 's' in A.dbg and ('buffer_store' in tx or 'permlane' in tx): return
    if 'p' in A.dbg and ('permlane' in tx): return
    if 't' in A.dbg and ('v_exp' in tx or 'v_rcp' in tx): tx = "v_mov_b32 v254, v255"
    if 'n' in A.dbg and not ('v_exp' in tx or 'v_rcp' in tx): tx = "v_mov_b32 v254, v255"
    if 'm' in A.dbg: tx = "v_mov_b32 v254, v255"
    e(tx)
def ready(op):
    k, f = op[2], op[3]
    if not k: return True
    c = 0 if k == 'F' else 1
    return (f, c) in fin and states_since(wrote[(f, c)]) >= 8
def need_of(f, c, t): return max(last7[('w', t, c)], last7[('x', f+t)])
for g, (s, f, c, t) in enumerate(ms):
    if s == 1:
        need = need_of(f, c, t)
        assert need < issued, (g, need, issued)
        if need > done:
            la = need
            for (s2, f2, c2, t2) in ms[g+1:g+3]:
                if s2 == 1 and need_of(f2, c2, t2) < issued: la = max(la, need_of(f2, c2, t2))
            n = min(issued - 1 - la, 15)
            e(f"s_waitcnt lgkmcnt({n})"); done = issued - 1 - n
    e(mf(s, f, c, t))
    wrote[(f, c)] = len(out) - 1
    if s == 1 and t == 4: fin.add((f, c))
    k = 0
    while issued < 32 and k < (2 if issued < 25 else 1):
        e(rd7[issued][1]); issued += 1; k += 1
    quota = A.quota
    while quota > 0:
        if not pend:
            if nxt < 8 and (nxt, 0) in fin and (A.epi == 9 or (nxt, 1) in fin):
                pend = epi9(nxt) if A.epi == 9 else epi10(nxt); nxt += 1
            else: break
        if pend[0][1] > quota or not ready(pend[0]): break
        op = pend.pop(0); emit_epi(op); quota -= op[1]
stamp_issue()
if A.epi == 9:
    rest = list(pend)
    for ff in range(nxt, 8): rest += epi9(ff)
    i = 0
    while i < len(rest):
        op = rest[i]
        if A.pk and op[4]:
            emit_epi(op, op[4]); i += 2
        else:
            emit_epi(op); i += 1
else:
    for op in pend: emit_epi(op)
    for ff in range(nxt, 8):
        for op in epi10(ff, A.pk): emit_epi(op)
if DIAG:
    e("s_waitcnt lgkmcnt(0)"); stamp_commit(10)
    stamp_now(11)
    e("s_waitcnt vmcnt(0)")
    lab("L_diag")
    e("s_load_dwordx2 s[58:59], s[0:1], 32")
    e("s_waitcnt vmcnt(0) lgkmcnt(0)")
    stamp_now(12)
    e("s_barrier")
    e(f"v_mbcnt_lo_u32_b32 v0, -1, 0")
    e(f"v_mbcnt_hi_u32_b32 v0, -1, v0")
    e("s_mov_b32 s52, s58"); e("s_mov_b32 s53, s59"); e("s_mov_b32 s54, 0x100000"); e("s_mov_b32 s55, 0x20000")
    e("v_mov_b32 v1, 0")
    vals = [f"s{SC0+i}" for i in range(NST)] + [f"s{SR0+i}" for i in range(NST)]
    for i, s in enumerate(vals):
        e(f"v_mov_b32 v2, {s}")
        e(f"v_cmp_eq_u32 vcc, {i}, v0")
        e("s_nop 1")
        e("v_cndmask_b32 v1, v1, v2, vcc")
    e("s_lshl_b32 s56, s%d, 3" % (48 if A.ntx else 2))
    e("s_lshr_b32 s49, s3, 6")
    e("s_add_u32 s56, s56, s49")
    e("s_lshl_b32 s56, s56, 7")
    e("v_lshlrev_b32 v3, 2, v0")
    e("v_cmp_gt_u32 vcc, 32, v0")
    e("s_and_saveexec_b64 s[4:5], vcc")
    e("buffer_store_dword v1, v3, s[52:55], s56 offen")
    e("s_waitcnt vmcnt(0)")
lab("L_end")
e("s_endpgm")
if DIAG: ldiag()
lab("L_cend")
if A.pad: out.append(f".fill {A.pad//4}, 4, 0xbf810000")

footer = f"""
.section .rodata,"a"
.p2align 6
.amdhsa_kernel {NAME}_kernel
  .amdhsa_next_free_vgpr 256
  .amdhsa_next_free_sgpr 96
  .amdhsa_accum_offset 256
  .amdhsa_group_segment_fixed_size 0
  .amdhsa_kernarg_size 40
  .amdhsa_user_sgpr_count 2
  .amdhsa_user_sgpr_kernarg_segment_ptr 1
  .amdhsa_system_sgpr_workgroup_id_x 1
.end_amdhsa_kernel
"""

def labels(text):
    import subprocess, tempfile, os
    d = tempfile.mkdtemp()
    open(d + "/a.s", "w").write(text)
    subprocess.check_call(["clang", "-x", "assembler", "-target", "amdgcn-amd-amdhsa", "-mcpu=gfx950", "-c", d + "/a.s", "-o", d + "/a.o"])
    o = subprocess.check_output(["llvm-objdump", "-t", d + "/a.o"], text=True)
    r = {}
    for l in o.splitlines():
        p = l.split()
        if len(p) >= 5 and p[-1].startswith("L_"): r[p[-1]] = int(p[0], 16)
    return r
text = header + "\n".join(out) + "\n" + footer
lb = labels(text)
sys.stderr.write("ldend %d consumer %d loop %d end %d\n" % (lb["L_ldend"], lb["L_consumer"], lb["L_loop"], lb["L_cend"]))
if A.cw:
    need = lb["L_pc"] + 255 * A.cw + 64 - lb["L_cend"]
    if need > 0: text = text.replace("L_cend:\n", "L_cend:\n.fill %d, 4, 0xbf810000\n" % ((need + 3) // 4))
    else: sys.stderr.write("WARNING: warm range ends %d bytes before the code end\n" % (-need))
sys.stdout.write(text)
```

```python
import sys, argparse, re

ap = argparse.ArgumentParser()
ap.add_argument("--diag", action="store_true")
ap.add_argument("--loader", default="w x w b10 x b5 w b0 r w x b5 w b0 w x b5 r w b0 w b0")
ap.add_argument("--store", default="nt", help="store cache flags")
ap.add_argument("--order", default="a", help="main-step MFMA order")
ap.add_argument("--bar", type=int, default=40, help="MFMA index of the mid-step barrier")
ap.add_argument("--rdend", type=int, default=74, help="last MFMA gap carrying a read")
ap.add_argument("--lag", type=int, default=1)
ap.add_argument("--xflag", default="nt", help="cache flags on X DMA")
ap.add_argument("--wflag", default="", help="cache flags on W DMA")
ap.add_argument("--pk", type=int, default=1)
ap.add_argument("--quota", type=int, default=8)
ap.add_argument("--pad", type=int, default=0)
ap.add_argument("--cw", type=int, default=0, help="code warm stride (bytes per lane, 0=off)")
ap.add_argument("--epi", type=int, default=9)
ap.add_argument("--tord", default="a", help="tail group order: a (chain) | t")
ap.add_argument("--dbg", default="", help="diagnostic tail edits: s=no store/permlane in gaps, t=trans->mov, w=waits right after MFMA")
ap.add_argument("--pfw", default="", help="p0:n vector L2 prefetch of W phases")
ap.add_argument("--pfx", default="", help="c0:n vector L2 prefetch of X blocks")
ap.add_argument("--pfpos", default="first", help="first | op P in loader")
ap.add_argument("--rot", type=int, default=1)
ap.add_argument("--ntx", type=int, default=0, help="xor wg id with this (diagnostic remap)")
ap.add_argument("--cpf", default="", help="p0:n[:c0[:nx]] cooperative prefetch: waves<n fetch W phase p0+w, wave 3 fetches X chunks c0..")
ap.add_argument("--ts", type=int, default=0, help="tap-stream W routine (ops wN = N taps)")
ap.add_argument("--pf1", type=int, default=0, help="prefetch own tap of W1 first")
ap.add_argument("--wrot", type=int, default=0, help="tap rotation by m-tile")
ap.add_argument("--dly", default="", help="DIAGNOSTIC mask,n : end delay loop for xcds in mask")
ap.add_argument("--rotl", default="", help="8 digits: rotation per wg&7")
ap.add_argument("--cpx", type=int, default=0, help="consumer scalar prefetch of X1: n loads per wave")
ap.add_argument("--cpw", default="", help="consumer scalar prefetch of W: phase:n loads per wave")
ap.add_argument("--pre", type=int, default=0)
ap.add_argument("--xst", type=int, default=0, help="stores through LDS by the loader waves")
ap.add_argument("--sd", type=int, default=5, help="MFMAs between ds_write and its barrier")
ap.add_argument("--se", type=int, default=20, help="exposed part: ops between ds_write and its barrier")
ap.add_argument("--xrot", type=int, default=0, help="X instr rotation by n-tile")
A = ap.parse_args()
DIAG = A.diag

NAME = "standalone__autoregressive_conv_wavernn__speech"
XBLK = 1040
XSLOT = 20480
WBASE = 2 * XSLOT
WSLOT = 40960
LDS_BYTES = WBASE + 3 * WSLOT

out = []
def e(s): out.append("    " + s)
def lab(s): out.append(s + ":")

header = f"""; x (2,4000,256) bf16 @0, w (5,256,512) bf16 @8, out (2,4000,256) bf16 @16, debug @24, ws @32
; @launch grid=(256,1,1) block=(512,1,1) lds={LDS_BYTES}
.amdgcn_target "amdgcn-amd-amdhsa--gfx950"
.text
.globl {NAME}_kernel
.p2align 8
.type {NAME}_kernel,@function
{NAME}_kernel:
"""
SX, SW, SO = 12, 16, 20
NST = 16
SC0, SR0 = 60, 76
def stamp_issue():
    if DIAG:
        e("s_memtime s[50:51]"); e("s_memrealtime s[52:53]")
def stamp_commit(idx=None):
    if DIAG:
        if idx is None:
            e(f"s_movreld_b32 s{SC0}, s50"); e(f"s_movreld_b32 s{SR0}, s52"); e("s_add_u32 m0, m0, 1")
        else:
            e(f"s_mov_b32 s{SC0+idx}, s50"); e(f"s_mov_b32 s{SR0+idx}, s52")
def stamp_now(idx):
    if DIAG:
        stamp_issue(); e("s_waitcnt lgkmcnt(0)"); stamp_commit(idx)

if DIAG:
    e("s_memtime s[54:55]"); e("s_memrealtime s[56:57]")
e(f"s_load_dwordx2 s[{SW}:{SW+1}], s[0:1], 8")
e(f"s_load_dwordx2 s[{SX}:{SX+1}], s[0:1], 0")
e("v_readfirstlane_b32 s3, v0")
e("s_lshr_b32 s28, s2, 8")
e("s_cbranch_scc1 L_end0")
if A.ntx: e("s_mov_b32 s48, s2"); e(f"s_xor_b32 s2, s2, {A.ntx}")
e("s_bitcmp1_b32 s3, 8")
e("s_cbranch_scc1 L_consumer")

sR, sT, sRX, sRW, sB, sMX, sS, sMW, sK, sO, sC = 20, 21, 22, 23, 24, 25, 26, 27, 28, 29, 30
sTau, sWS, sT1 = 31, 36, 37
RET, PC = 32, 34
VX, VW, VXT, VW2 = 3, 5, 7, 10
e("v_lshrrev_b32 v2, 3, v0")
e("v_lshrrev_b32 v4, 4, v0")
e(f"s_and_b32 s{sR}, s2, 3")
e(f"s_lshr_b32 s{sT}, s2, 5")
e("v_bfi_b32 v4, 6, v2, v4")
if A.wrot:
    e(f"s_mul_i32 s{sTau}, s{sT}, 5")
e(f"s_lshl3_add_u32 s{sT}, s{sR}, s{sT}")
e("v_xor_b32 v4, v4, v0")
e(f"s_mul_i32 s{sT}, s{sT}, 64000")
e("v_bfi_b32 v4, 14, v4, v0")
e(f"s_addk_i32 s{sT}, 0xf000")
e("v_and_b32 v6, 7, v4")
if A.rotl:
    lit = sum(int(ch) << (4*i) for i, ch in enumerate(A.rotl))
    e(f"s_lshl_b32 s{sR}, s2, 2"); e(f"s_lshr_b32 s{sR}, 0x{lit:x}, s{sR}"); e(f"s_and_b32 s{sR}, s{sR}, 3")
elif A.rot == 1: pass
elif A.rot == 3: e(f"s_min_u32 s{sR}, s{sR}, 2")
elif A.rot == 4: e(f"s_and_b32 s{sR}, s2, 1")
elif A.rot == 5: e(f"s_and_b32 s{sR}, s2, 2")
elif A.rot == 6: e(f"s_lshr_b32 s{sR}, s{sR}, 1")
elif A.rot == 7: e(f"s_andn2_b32 s{sR}, 1, s2")
elif A.rot == 0: e(f"s_mov_b32 s{sR}, 0")
e(f"s_lshl_b32 s{sRX}, s{sR}, 7")
e(f"s_lshl_b32 s{sRW}, s{sR}, 16")
e("v_lshrrev_b32 v7, 3, v4")
e(f"s_and_b32 s{sB}, s2, 24")
e(f"s_lshl4_add_u32 s{sRW}, s{sB}, s{sRW}")
CPF = list(map(int, A.cpf.split(':'))) if A.cpf else None
sP, sPX = 38, 39
if CPF and len(CPF) > 2:
    e(f"s_lshl_b32 s{sPX}, s{sB}, 11")
    e(f"s_add_u32 s{sPX}, s{sPX}, s{sT}")
e("v_lshlrev_b32 v7, 9, v7")
e(f"s_mov_b32 s{SX+2}, 2048000")
e("s_bitcmp1_b32 s2, 2")
e(f"s_cselect_b32 s{sB}, s{SX+2}, 0")
e(f"v_lshl_add_u32 v{VW}, v6, 4, v7")
e(f"s_lshl_b32 s{SX+3}, 1, 17")
e(f"s_lshl_b32 s{SW+3}, 1, 17")
e(f"s_lshl_b32 s{SW+2}, 5, 18")
e("v_and_b32 v1, 7, v0")
e(f"s_movk_i32 s{sK}, 16384")
e(f"s_lshl_b32 s{sWS}, 5, 13")
if CPF:
    e(f"s_lshr_b32 s{sP}, s2, 3")
    e("v_lshlrev_b32 v8, 7, v1")
    e(f"s_lshl1_add_u32 s{sP}, s{sP}, s3")
    e("v_and_b32 v9, 7, v2")
    e(f"s_add_u32 s{sP}, s{sP}, s{sRX}")
    if CPF[0]: e(f"s_add_u32 s{sP}, s{sP}, {64*CPF[0]}")
    e("v_lshl_add_u32 v8, v9, 18, v8")
    e(f"s_lshl_b32 s{sP}, s{sP}, 9")
    if A.rot == 1: e(f"s_bitset0_b32 s{sP}, 18")
    if len(CPF) > 2:
        e("v_and_b32 v9, 31, v0")
        e(f"v_lshl_add_u32 v9, v9, 9, s{sPX}")
        e("v_and_b32 v11, 32, v0")
        e("v_lshl_add_u32 v9, v11, 2, v9")
if 'P' in A.loader.split():
    e(f"s_lshr_b32 s{sP}, s2, 3")
    e("v_lshlrev_b32 v8, 7, v1")
    e(f"s_lshl1_add_u32 s{sP}, s{sP}, s{sRX}")
    e("v_lshl_add_u32 v8, v2, 18, v8")
    e(f"s_add_u32 s{sP}, s{sP}, 64")
    e(f"s_lshl_b32 s{sP}, s{sP}, 9")
e(f"v_lshl_add_u32 v1, v1, 4, s{sT}")
e(f"s_lshr_b32 s{sMX}, s3, 6")
if A.wrot:
    e(f"s_and_b32 s{sTau}, s{sTau}, -8")
    e(f"s_add_u32 s{sMW}, s{sMX}, s{sTau}")
    e(f"s_lshl_b32 s{sMW}, s{sMW}, 10")
    e(f"s_add_u32 s{sMW}, s{sMW}, s{sWS}")
    e(f"s_lshl_b32 s{sTau}, s{sTau}, 15")
else:
    e(f"s_lshl4_add_u32 s{sMW}, s3, s{sWS}")
e(f"s_mulk_i32 s{sMX}, {XBLK}")
e(f"v_lshl_add_u32 v{VX}, v2, 9, v1")
e(f"v_add_u32 v{VW2}, s{sK}, v{VW}")
ops = A.loader.split()
def emit_x():
    lab("L_x")
    if not A.xrot:
        e(f"s_mov_b32 m0, s{sMX}")
        e(f"v_mov_b32 v{VXT}, v{VX}")
        e(f"s_mov_b32 s{sC}, 3")
        lab("L_xl")
        e(f"buffer_load_dwordx4 v{VXT}, s[{SX}:{SX+3}], s{sRX} offen {A.xflag} lds")
        e(f"s_addk_i32 m0, {4*XBLK}")
        e(f"v_add_u32 v{VXT}, s{sK}, v{VXT}")
        e(f"s_sub_u32 s{sC}, s{sC}, 1")
        e("s_cbranch_scc0 L_xl")
    else:
        e(f"s_mov_b32 s{sC}, s{sNT}")
        lab("L_xl")
        e(f"s_mul_i32 s{sT1}, s{sC}, {4*XBLK}")
        e(f"v_lshl_add_u32 v{VXT}, s{sC}, 14, v{VX}")
        e(f"s_add_u32 m0, s{sT1}, s{sMX}")
        e(f"s_add_u32 s{sC}, s{sC}, 1")
        e(f"buffer_load_dwordx4 v{VXT}, s[{SX}:{SX+3}], s{sRX} offen {A.xflag} lds")
        e(f"s_and_b32 s{sC}, s{sC}, 3")
        e(f"s_cmp_lg_u32 s{sC}, s{sNT}")
        e("s_cbranch_scc1 L_xl")
        e(f"s_add_u32 m0, s{sMX}, {16*XBLK}")
        e(f"v_lshl_add_u32 v{VXT}, s{sK}, 2, v{VX}")
    e("s_bfm_b64 exec, 40, 0")
    e(f"buffer_load_dwordx4 v{VXT}, s[{SX}:{SX+3}], s{sRX} offen {A.xflag} lds")
    e("s_mov_b64 exec, -1")
    e(f"s_xor_b32 s{sMX}, s{sMX}, {XSLOT}")
    e(f"s_addk_i32 s{sRX}, 128")
    e(f"s_bitset0_b32 s{sRX}, 9")
    e(f"s_setpc_b64 s[{RET}:{RET+1}]")
def emit_w_ts(first):
    lab("L_w")
    e(f"s_mov_b32 m0, s{sMW}")
    if first: e("s_waitcnt lgkmcnt(0)")
    lab("L_wl")
    e(f"buffer_load_dwordx4 v{VW}, s[{SW}:{SW+3}], s{sO} offen {A.wflag} lds")
    e("s_addk_i32 m0, 4096")
    e(f"s_lshl4_add_u32 s{sT1}, s{sK}, s{sO}")
    e(f"buffer_load_dwordx4 v{VW2}, s[{SW}:{SW+3}], s{sO} offen {A.wflag} lds")
    e("s_addk_i32 m0, 4096")
    e(f"s_sub_u32 s{sO}, s{sT1}, s{SW+2}")
    e(f"s_cselect_b32 s{sO}, s{sT1}, s{sO}")
    e(f"s_cselect_b32 s{sT1}, 0, s{sWS}")
    e(f"s_sub_u32 m0, m0, s{sT1}")
    e(f"s_cmp_lg_u32 s{sO}, s{sS}")
    e("s_cbranch_scc1 L_wn")
    e(f"s_add_u32 m0, m0, s{sWS}")
    e(f"s_lshl1_add_u32 s{sRW}, s{sK}, s{sRW}")
    e(f"s_bitset0_b32 s{sRW}, 18")
    e(f"s_add_u32 s{sS}, s{sRW}, s{sTau}")
    e(f"s_mov_b32 s{sO}, s{sS}")
    lab("L_wn")
    e(f"s_sub_u32 s{sC}, s{sC}, 1")
    e("s_cbranch_scc0 L_wl")
    e(f"s_mov_b32 s{sMW}, m0")
    e(f"s_setpc_b64 s[{RET}:{RET+1}]")
sNT = 40
sSX = 41
if A.xrot: e(f"s_bfe_u32 s{sNT}, s2, 0x20003")
if A.ts:
    assert A.wrot
    e(f"s_add_u32 s{sS}, s{sRW}, s{sTau}")
    e(f"s_mov_b32 s{sO}, s{sS}")
    e(f"s_getpc_b64 s[{RET}:{RET+1}]")
    lab("L_pc2")
    e(f"s_add_u32 s{RET}, s{RET}, L_sched-L_pc2")
    e(f"s_addc_u32 s{RET+1}, s{RET+1}, 0")
    if ops[0][0] == 'w':
        e(f"s_mov_b32 s{sC}, {int(ops[0][1:] or 5)-1}")
        emit_w_ts(True); emit_x()
    else:
        e("s_waitcnt lgkmcnt(0)")
        e(f"s_add_u32 s{SX}, s{SX}, s{sB}")
        e(f"s_addc_u32 s{SX+1}, s{SX+1}, 0")
        emit_x(); emit_w_ts(False)
else:
    assert ops[0] == 'x'
    e(f"s_getpc_b64 s[{RET}:{RET+1}]")
    lab("L_pc2")
    e(f"s_add_u32 s{RET}, s{RET}, L_sched-L_pc2")
    e(f"s_addc_u32 s{RET+1}, s{RET+1}, 0")
    if A.pf1:
        if A.wrot: e(f"s_add_u32 s{sO}, s{sRW}, s{sTau}")
        e(f"s_lshl1_add_u32 s{sO}, s{sK}, s{sO if A.wrot else sRW}")
    e("s_waitcnt lgkmcnt(0)")
    if A.pf1:
        e(f"buffer_load_dword v8, v{VW}, s[{SW}:{SW+3}], s{sO} offen")
        e(f"buffer_load_dword v9, v{VW2}, s[{SW}:{SW+3}], s{sO} offen")
    e(f"s_add_u32 s{SX}, s{SX}, s{sB}")
    e(f"s_addc_u32 s{SX+1}, s{SX+1}, 0")
    if CPF:
        n = CPF[1]
        if n < 4:
            e(f"s_cmpk_ge_u32 s3, {64*n}")
            e("s_cbranch_scc1 L_pfx")
        e(f"buffer_load_dword v12, v8, s[{SW}:{SW+3}], s{sP} offen")
        if len(CPF) > 2:
            e("s_branch L_x")
            lab("L_pfx")
            if n < 3:
                e(f"s_cmpk_lt_u32 s3, 192")
                e("s_cbranch_scc1 L_x")
            if len(CPF) > 3 and CPF[3] == 1: e("s_bfm_b64 exec, 32, 0")
            e(f"buffer_load_dword v12, v9, s[{SX}:{SX+3}], s{sRX} offen offset:{128*CPF[2]} {A.xflag}")
            if len(CPF) > 3 and CPF[3] == 1: e("s_mov_b64 exec, -1")
        else:
            lab("L_pfx")
    emit_x()
    lab("L_w")
    e(f"s_mov_b32 m0, s{sMW}")
    if A.wrot:
        e(f"s_add_u32 s{sS}, s{sRW}, s{sTau}")
        e(f"s_mov_b32 s{sO}, s{sS}")
    else:
        e(f"s_mov_b32 s{sO}, s{sRW}")
    lab("L_wl")
    e(f"buffer_load_dwordx4 v{VW}, s[{SW}:{SW+3}], s{sO} offen {A.wflag} lds")
    e("s_addk_i32 m0, 4096")
    if not A.wrot:
        e("s_nop 0")
        e(f"buffer_load_dwordx4 v{VW2}, s[{SW}:{SW+3}], s{sO} offen {A.wflag} lds")
        e("s_addk_i32 m0, 4096")
        e(f"s_lshl4_add_u32 s{sO}, s{sK}, s{sO}")
        e(f"s_cmp_lt_u32 s{sO}, s{SW+2}")
        e("s_cbranch_scc1 L_wl")
    else:
        e(f"s_lshl4_add_u32 s{sT1}, s{sK}, s{sO}")
        e(f"buffer_load_dwordx4 v{VW2}, s[{SW}:{SW+3}], s{sO} offen {A.wflag} lds")
        e("s_addk_i32 m0, 4096")
        e(f"s_sub_u32 s{sO}, s{sT1}, s{SW+2}")
        e(f"s_cselect_b32 s{sO}, s{sT1}, s{sO}")
        e(f"s_cselect_b32 s{sT1}, 0, s{sWS}")
        e(f"s_sub_u32 m0, m0, s{sT1}")
        e(f"s_cmp_lg_u32 s{sO}, s{sS}")
        e("s_cbranch_scc1 L_wl")
    e(f"s_add_u32 s{sMW}, s{sMW}, s{sWS}")
    e(f"s_lshl1_add_u32 s{sRW}, s{sK}, s{sRW}")
    e(f"s_bitset0_b32 s{sRW}, 18")
    e(f"s_setpc_b64 s[{RET}:{RET+1}]")
lab("L_sched")
if A.ts and ops[0][0] == 'w':
    e(f"s_add_u32 s{SX}, s{SX}, s{sB}")
    e(f"s_addc_u32 s{SX+1}, s{SX+1}, 0")
used = {0, 12}
late = []
cur_out = out
def sched_ops(ops):
    for op in ops:
        k, a = op[0], op[1:]
        if k == 'x': e(f"s_call_b64 s[{RET}:{RET+1}], L_x")
        elif k == 'w':
            if A.ts: e(f"s_mov_b32 s{sC}, {int(a or 5)-1}")
            e(f"s_call_b64 s[{RET}:{RET+1}], L_w")
        elif k == 'r': e(f"s_sub_u32 s{sMW}, s{sMW}, {3*WSLOT}")
        elif k == 'b':
            e(f"s_waitcnt vmcnt({int(a)})"); e("s_barrier")
        elif k == 'B': e("s_barrier")
        elif k == 'P': e(f"buffer_load_dword v12, v8, s[{SW}:{SW+3}], s{sP} offen")
        elif k == 'C':
            sh = int(a or 7)
            e(f"s_getpc_b64 s[{PC}:{PC+1}]")
            lab("L_pcC")
            e(f"s_add_u32 s{PC}, s{PC}, L_tail-L_pcC")
            e(f"s_addc_u32 s{PC+1}, s{PC+1}, 0")
            e(f"v_lshlrev_b32 v13, {sh}, v0")
            e(f"v_min_u32 v13, L_end-L_tail, v13")
            e(f"global_load_dword v12, v13, s[{PC}:{PC+1}]")
        elif k == 'Z':
            e(f"s_and_b32 s{sSX}, s2, 24"); e(f"s_lshl_b32 s{sSX}, s{sSX}, 5"); e(f"s_add_u32 s{sSX}, s{sSX}, s3")
            e(f"s_mulk_i32 s{sSX}, 72"); e(f"s_add_u32 s{sSX}, s{sSX}, s{sT}"); e(f"s_max_i32 s{sSX}, s{sSX}, 0")
        elif k == 'S':
            e(f"s_add_u32 s{sT1}, s{sSX}, s{sRX}")
            for i in range(int(a[0]), int(a[1])): e(f"s_buffer_load_dwordx2 s[46:47], s[{SX}:{SX+3}], s{sT1} offset:{i*512+60}")
        elif k == 'y': e("s_load_dwordx2 s[8:9], s[0:1], 16")
        elif k == 'Y':
            e("v_lshrrev_b32 v14, 5, v0"); e("v_and_b32 v15, 3, v2"); e("v_lshl_add_u32 v15, v14, 4, v15")
            e("v_xor_b32 v14, v14, v0"); e("v_and_b32 v14, 7, v14"); e("v_lshlrev_b32 v14, 4, v14"); e("v_lshl_add_u32 v14, v15, 7, v14")
            e("v_and_b32 v16, 7, v0"); e("v_lshlrev_b32 v16, 4, v16"); e("v_lshl_add_u32 v15, v15, 9, v16")
            e("s_and_b32 s4, s2, 24"); e(f"s_lshl4_add_u32 s4, s4, s{sT}"); e("s_addk_i32 s4, 4096"); e("v_add_u32 v15, s4, v15")
            e(f"s_add_u32 s10, s{sT}, {4096+64000}"); e(f"s_mov_b32 s11, s{SX+3}"); e(f"s_mov_b32 s{sC}, 3")
            e("s_movk_i32 s5, 512"); e("s_movk_i32 s6, 2048")
            e("s_waitcnt lgkmcnt(0)"); e(f"s_add_u32 s8, s8, s{sB}"); e("s_addc_u32 s9, s9, 0")
        elif k == 'O':
            lab("L_o")
            e("s_barrier"); e("ds_read_b128 v[16:19], v14"); e("v_add_u32 v14, s5, v14"); e(f"s_sub_u32 s{sC}, s{sC}, 1"); e("s_waitcnt lgkmcnt(0)")
            e(f"buffer_store_dwordx4 v[16:19], v15, s[8:11], 0 offen {A.store}"); e("v_add_u32 v15, s6, v15"); e("s_cbranch_scc0 L_o")
        elif k == 'k': e("s_waitcnt lgkmcnt(0)")
        elif k == 'v': e(f"s_waitcnt vmcnt({int(a)})")
        elif k == 's': stamp_now(int(a)); used.add(int(a))
        else: raise ValueError(op)
def sched_end():
    if DIAG: e("s_branch L_ldiag")
    else: e("s_endpgm")
if 'L' in ops:
    i = ops.index('L')
    sched_ops(ops[1:i]); e("s_branch L_late"); LATE = ops[i+1:]
else:
    sched_ops(ops[1:]); sched_end(); LATE = None
lab("L_end0")
e("s_endpgm")
lab("L_ldend")
def ldiag():
    lab("L_ldiag")
    e(f"s_mov_b32 s{SC0}, s54"); e(f"s_mov_b32 s{SR0}, s56")
    for i in range(NST):
        if i not in used: e(f"s_mov_b32 s{SC0+i}, 0"); e(f"s_mov_b32 s{SR0+i}, 0")
    e("s_branch L_diag")

out.append(".p2align 6")
lab("L_consumer")
S_T0, S_E0B, S_WAVE, S_BATCH = 24, 25, 26, 27
S_TMP = 28
S_IT = 36
S_DX, S_DW = 37, 38
S_C1, S_C2, S_MASK = 39, 40, 41
S_WP, S_WM2, S_WC = 42, 43, 44
XR = [0, 48]
WR = [96, 136]
ACC = 176
VXB, VWF, VWG, VO0, VO1, VO2 = 240, 241, 242, 243, 244, 245
TT, TU = 246, 250
S_WM, S_WN = S_TMP, S_TMP + 1
if not A.xst: e("s_load_dwordx2 s[8:9], s[0:1], 16")
if A.cpx or A.cpw:
    assert A.rot == 7
    e("s_and_b32 s24, s2, 3"); e("s_lshr_b32 s30, s2, 5"); e("s_lshl3_add_u32 s24, s24, s30"); e("s_mul_i32 s24, s24, 64000")
    e("s_and_b32 s25, s2, 24"); e("s_lshl_b32 s25, s25, 5"); e("s_add_u32 s25, s25, s3"); e("s_mulk_i32 s25, 72")
    e("s_add_u32 s25, s25, s24"); e(f"s_addk_i32 s25, {-(4096+18432) & 0xffff:#x}"); e("s_max_i32 s25, s25, 0")
    e("s_andn2_b32 s26, 1, s2"); e("s_lshl_b32 s27, s26, 7"); e("s_add_u32 s25, s25, s27")
    e(f"s_mov_b32 s{SX+2}, 2048000"); e("s_bitcmp1_b32 s2, 2"); e(f"s_cselect_b32 s28, s{SX+2}, 0"); e(f"s_lshl_b32 s{SX+3}, 1, 17")
    if A.cpw:
        ph, nw = map(int, A.cpw.split(':'))
        e("s_lshr_b32 s29, s2, 3"); e("s_lshl_b32 s29, s29, 8"); e("s_add_u32 s29, s29, s3"); e("s_addk_i32 s29, 0xff00")
        e("s_mul_i32 s29, s29, 20")
        e("s_lshr_b32 s30, s29, 15"); e("s_and_b32 s29, s29, 0x7fff"); e("s_lshl_b32 s30, s30, 18"); e("s_add_u32 s29, s29, s30")
        e("s_lshl_b32 s30, s26, 16"); e("s_add_u32 s29, s29, s30")
        e(f"s_lshl_b32 s{SW+3}, 1, 17"); e(f"s_lshl_b32 s{SW+2}, 5, 18")
    e("s_waitcnt lgkmcnt(0)")
    e(f"s_add_u32 s{SX}, s{SX}, s28"); e(f"s_addc_u32 s{SX+1}, s{SX+1}, 0")
    for i in range(A.cpx): e(f"s_buffer_load_dwordx2 s[46:47], s[{SX}:{SX+3}], s25 offset:{i*512+128+60}")
    if A.cpw:
        for i in range(nw): e(f"s_buffer_load_dwordx2 s[46:47], s[{SW}:{SW+3}], s29 offset:{ph*32768+i*128+60}")
if LATE is not None:
    e("s_branch L_cons2")
    lab("L_late")
    sched_ops(LATE); sched_end()
    lab("L_cons2")
if DIAG:
    for i in range(NST): e(f"s_mov_b32 s{SC0+i}, 0"); e(f"s_mov_b32 s{SR0+i}, 0")
e("v_and_b32 v0, 63, v0")
e(f"s_bfe_u32 s{S_WN}, s3, 0x20006")
if not A.xst:
    e(f"s_and_b32 s{S_T0}, s2, 3")
    e(f"s_lshr_b32 s{S_TMP+2}, s2, 5")
    e(f"s_lshl3_add_u32 s{S_T0}, s{S_T0}, s{S_TMP+2}")
    e(f"s_mul_i32 s{S_T0}, s{S_T0}, 125")
    e(f"s_and_b32 s{S_E0B}, s2, 24")
    e(f"s_lshl_b32 s{S_E0B}, s{S_E0B}, 4")
    e(f"s_mov_b32 s{SO+2}, 2048000")
    e("s_bitcmp1_b32 s2, 2")
    e(f"s_cselect_b32 s{S_BATCH}, s{SO+2}, 0")
    e(f"s_mov_b32 s{SO+3}, 0x20000")
e("v_and_b32 v2, 15, v0")
e("v_lshrrev_b32 v3, 4, v0")
e("v_lshrrev_b32 v4, 1, v2")
e("v_and_b32 v5, 1, v2")
e(f"v_mul_u32_u24 v6, {2*XBLK}, v4")
e("v_lshl_add_u32 v6, v5, 7, v6")
e(f"v_lshl_add_u32 v{VXB}, v3, 4, v6")
e("v_bfe_u32 v6, v0, 2, 2")
e("v_lshl_add_u32 v7, v3, 3, v6")
e("v_lshlrev_b32 v7, 8, v7")
e(f"v_xor_b32 v8, s{S_WN}, v6")
e("v_lshl_add_u32 v7, v8, 5, v7")
e("v_and_b32 v9, 1, v3")
e("v_lshl_add_u32 v7, v9, 7, v7")
e("v_and_b32 v8, 3, v0")
e("v_lshl_add_u32 v7, v8, 3, v7")
e(f"v_add_u32 v{VWF}, {WBASE}, v7")
e("v_xor_b32 v7, 0x80, v7")
e(f"v_add_u32 v{VWG}, {WBASE}, v7")
if A.xst:
    e("v_lshl_add_u32 v6, v4, 4, v5"); e("v_lshrrev_b32 v8, 1, v3"); e(f"v_lshl_add_u32 v8, s{S_WN}, 1, v8"); e("v_xor_b32 v8, v8, v4")
    e("v_lshlrev_b32 v8, 4, v8"); e("v_lshl_add_u32 v6, v6, 7, v8"); e(f"v_lshl_add_u32 v{VO0}, v9, 3, v6")
else:
    e("v_lshl_add_u32 v6, v4, 4, v5")
    e("v_lshl_add_u32 v6, v9, 1, v6")
    e("v_cmp_lt_u32 vcc, 0x70, v6")
    e(f"v_add_u32 v6, s{S_T0}, v6")
    e("v_lshlrev_b32 v6, 9, v6")
    e("v_lshrrev_b32 v8, 1, v3")
    e("v_lshl_add_u32 v6, v8, 4, v6")
    e(f"s_lshl_b32 s{S_TMP+3}, s{S_WN}, 5")
    e(f"s_add_u32 s{S_TMP+3}, s{S_TMP+3}, s{S_E0B}")
    e(f"v_add_u32 v{VO0}, s{S_TMP+3}, v6")
    e("v_bfrev_b32 v7, 1")
e(f"s_mov_b32 s{S_DX}, {XSLOT}")
e(f"s_mov_b32 s{S_WP}, {WSLOT}")
e(f"s_mov_b32 s{S_WM2}, {-2*WSLOT & 0xffffffff}")
e(f"s_mov_b32 s{S_WC}, 0")
if not A.xst: e(f"v_cndmask_b32 v{VO2}, v{VO0}, v7, vcc")
for r in range(0, 64, 2):
    e(f"v_mov_b64 v[{ACC+r}:{ACC+r+1}], 0")
e(f"s_mov_b32 s{S_C1}, 0x4038aa3b")
e(f"s_mov_b32 s{S_C2}, 0xbfb8aa3b")
e(f"s_mov_b32 s{S_MASK}, 0x7fffffff")
e(f"s_mov_b32 s{S_IT}, 0")
S_P1, S_P2, S_ONE = 30, 32, 34
for i, v in enumerate([f"s{S_C1}", f"s{S_C1}", f"s{S_C2}", f"s{S_C2}", "1.0", "1.0"]): e(f"s_mov_b32 s{30+i}, {v}")
if not (A.cpx or A.cpw) and (DIAG or not A.xst): e("s_waitcnt lgkmcnt(0)")
if DIAG:
    e(f"s_mov_b32 s{SC0}, s54"); e(f"s_mov_b32 s{SR0}, s56"); e("s_mov_b32 m0, 2")
if not A.xst:
    e(f"s_add_u32 s{SO}, s8, s{S_BATCH}")
    e(f"s_addc_u32 s{SO+1}, s9, 0")

def xreg(s, f): return XR[s] + 4*f
def wreg(s, t, c): return WR[s] + 8*t + 4*c
def areg(f, c): return ACC + 8*f + 4*c
def rd_x(s, f, ks):
    r = xreg(s, f)
    return (('x', f), f"ds_read_b128 v[{r}:{r+3}], v{VXB} offset:{(f>>2)*XBLK + (f&3)*256 + ks*64}")
def rd_w(s, t, c, u, wslot):
    r = wreg(s, t, c) + 2*u
    return (('w', t, c), f"ds_read_b64_tr_b16 v[{r}:{r+1}], v{VWG if c else VWF} offset:{t*8192 + u*1024}")
def mf(s, f, c, t):
    a = areg(f, c); w = wreg(s, t, c); x = xreg(s, f+t)
    return f"v_mfma_f32_16x16x32_bf16 v[{a}:{a+3}], v[{w}:{w+3}], v[{x}:{x+3}], v[{a}:{a+3}]"
def order(kind):
    if kind == 't': return [(f, c, t) for t in range(5) for c in range(2) for f in range(8)]
    if kind == 'a': return [(f, c, t) for f in range(8) for c in range(2) for t in range(5)]
    if kind == 'A': return [(f, c, t) for f in range(8) for t in range(5) for c in range(2)]
    raise ValueError(kind)
def reads_for(s, ks, wslot, seq):
    l = []; seen = set()
    for (f, c, t) in seq:
        if ('w', t, c) not in seen:
            seen.add(('w', t, c)); l += [rd_w(s, t, c, 0, wslot), rd_w(s, t, c, 1, wslot)]
        if ('x', f+t) not in seen:
            seen.add(('x', f+t)); l.append(rd_x(s, f+t, ks))
    assert len(l) == 32
    return l
def need_waits(seq, rd, upto):
    last = {}
    for i, (key, _) in enumerate(rd): last[key] = i
    w = {}; cur = 99
    for i, (f, c, t) in enumerate(seq[:upto]):
        n = len(rd) - 1 - max(last[('w', t, c)], last[('x', f+t)])
        n = min(n, 15)
        if n < cur: w[i] = n; cur = n
    return w
SEQ = order(A.order)
def step(cur, rd_cur, rd, pre=None):
    waits = need_waits(SEQ, rd_cur, A.bar)
    n = 80
    slots = {}
    span = A.rdend - A.bar + 1
    for k in range(32):
        g = A.bar + (k * span) // 32
        slots.setdefault(g, []).append(rd[k][1])
    for g in range(n):
        if g in waits: e(f"s_waitcnt lgkmcnt({waits[g]})")
        if g == A.bar - 10: stamp_issue()
        if g == A.bar:
            e("s_waitcnt lgkmcnt(0)")
            e("s_barrier")
            stamp_commit()
        f, c, t = SEQ[g]
        e(mf(cur, f, c, t))
        if pre and 12 <= g < 12 + len(pre): e(pre[g-12])
        for r in slots.get(g, []): e(r)

if DIAG and A.pre: stamp_now(13)
e("s_barrier")
stamp_now(1)
rdA = reads_for(0, 0, 0, SEQ)
rdB = reads_for(1, 1, 1, SEQ)
for r in rdA: e(r[1])
out.append(".p2align 6")
lab("L_loop")
WADV = [f"s_add_u32 s{S_WC}, s{S_WC}, 1", f"s_cmp_eq_u32 s{S_WC}, 3", f"s_cselect_b32 s{S_DW}, s{S_WM2}, s{S_WP}", f"s_cselect_b32 s{S_WC}, 0, s{S_WC}",
        f"v_add_u32 v{VWF}, s{S_DW}, v{VWF}", f"v_add_u32 v{VWG}, s{S_DW}, v{VWG}"]
step(0, rdA, rdB, pre=WADV)
step(1, rdB, rdA, pre=WADV + [f"v_add_u32 v{VXB}, s{S_DX}, v{VXB}", f"s_sub_u32 s{S_DX}, 0, s{S_DX}", f"s_add_u32 s{S_IT}, s{S_IT}, 1"])
e(f"s_cmp_lt_u32 s{S_IT}, 3")
e("s_cbranch_scc1 L_loop")

def store_ops(f, Q):
    l = []
    l.append(("s_nop 1", 8, ''))
    l.append((f"v_permlane16_swap_b32 v{Q}, v{Q+2}", 4, ''))
    l.append((f"v_permlane16_swap_b32 v{Q+1}, v{Q+3}", 4, ''))
    vo = [VO0, VO0, VO0, VO2][f >> 1]
    o = (f & ~1) * 1024
    if o < 4096: l.append((f"buffer_store_dwordx4 v[{Q}:{Q+3}], v{vo}, s[{SO}:{SO+3}], 0 offen offset:{o} {A.store}", 4, ''))
    else: l.append((f"buffer_store_dwordx4 v[{Q}:{Q+3}], v{vo}, s[{SO}:{SO+3}], s{S_IT} offen offset:{o-4096} {A.store}", 4, ''))
    return l
def epi10(f, pk=False):
    F = areg(f, 0); G = areg(f, 1)
    P = areg(f & ~1, 0) + 2*(f & 1)
    l = []
    if not pk:
        for r in range(4): l.append((f"v_mul_f32 v{TT+r}, s{S_C1}, v{F+r}", 4, 'F'))
        for r in range(4): l.append((f"v_mul_f32 v{G+r}, s{S_C2}, v{G+r}", 4, 'G'))
    else:
        for r in (0, 2): l.append((f"v_pk_mul_f32 v[{TT+r}:{TT+r+1}], v[{F+r}:{F+r+1}], s[{S_P1}:{S_P1+1}]", 4, 'F'))
        for r in (0, 2): l.append((f"v_pk_mul_f32 v[{G+r}:{G+r+1}], v[{G+r}:{G+r+1}], s[{S_P2}:{S_P2+1}]", 4, 'G'))
    for r in range(4): l.append((f"v_exp_f32 v{TT+r}, -abs(v{TT+r})", 8, ''))
    for r in range(4): l.append((f"v_exp_f32 v{G+r}, v{G+r}", 8, ''))
    if not pk:
        for r in range(4): l.append((f"v_add_f32 v{TU+r}, 1.0, v{TT+r}", 4, ''))
        for r in range(4): l.append((f"v_fma_f32 v{TU+r}, v{TU+r}, v{G+r}, v{TU+r}", 4, ''))
        for r in range(4): l.append((f"v_sub_f32 v{G+r}, 1.0, v{TT+r}", 4, ''))
    else:
        for r in (0, 2): l.append((f"v_pk_add_f32 v[{TU+r}:{TU+r+1}], v[{TT+r}:{TT+r+1}], s[{S_ONE}:{S_ONE+1}]", 4, ''))
        for r in (0, 2): l.append((f"v_pk_fma_f32 v[{TU+r}:{TU+r+1}], v[{TU+r}:{TU+r+1}], v[{G+r}:{G+r+1}], v[{TU+r}:{TU+r+1}]", 4, ''))
        for r in (0, 2): l.append((f"v_pk_add_f32 v[{G+r}:{G+r+1}], v[{TT+r}:{TT+r+1}], s[{S_ONE}:{S_ONE+1}] neg_lo:[1,0] neg_hi:[1,0]", 4, ''))
    for r in range(4): l.append((f"v_rcp_f32 v{TU+r}, v{TU+r}", 8, ''))
    for r in range(4): l.append((f"v_bfi_b32 v{G+r}, s{S_MASK}, v{G+r}, v{F+r}", 4, ''))
    if not pk:
        for r in range(4): l.append((f"v_mul_f32 v{G+r}, v{G+r}, v{TU+r}", 4, ''))
    else:
        for r in (0, 2): l.append((f"v_pk_mul_f32 v[{G+r}:{G+r+1}], v[{G+r}:{G+r+1}], v[{TU+r}:{TU+r+1}]", 4, ''))
    l.append((f"v_cvt_pk_bf16_f32 v{P}, v{G}, v{G+1}", 4, ''))
    l.append((f"v_cvt_pk_bf16_f32 v{P+1}, v{G+2}, v{G+3}", 4, ''))
    if f & 1: l += store_ops(f, areg(f & ~1, 0))
    return [(t, c_, k, f) for (t, c_, k) in l]
def epi9(f):
    F = areg(f, 0); G = areg(f, 1)
    T = TT + 4*(f & 1)
    P = areg(f & ~1, 0) + 2*(f & 1)
    if A.xst: P = F
    def grp(fmt, cost, k, pkfmt=None):
        return ('grp', [fmt(r) for r in range(4)], cost, k, [pkfmt(r) for r in (0, 2)] if pkfmt else None)
    def pr(b, r): return f"v[{b+r}:{b+r+1}]"
    gs = [
        grp(lambda r: f"v_mul_f32 v{T+r}, s{S_C1}, v{F+r}", 4, 'F', lambda r: f"v_pk_mul_f32 {pr(T,r)}, {pr(F,r)}, s[{S_P1}:{S_P1+1}]"),
        grp(lambda r: f"v_bfi_b32 v{F+r}, s{S_MASK}, 0.5, v{F+r}", 4, 'F'),
        grp(lambda r: f"v_exp_f32 v{T+r}, -abs(v{T+r})", 8, ''),
        grp(lambda r: f"v_fma_f32 v{F+r}, v{T+r}, v{F+r}, v{F+r}", 4, '', lambda r: f"v_pk_fma_f32 {pr(F,r)}, {pr(T,r)}, {pr(F,r)}, {pr(F,r)}"),
        grp(lambda r: f"v_mul_f32 v{G+r}, s{S_C2}, v{G+r}", 4, 'G', lambda r: f"v_pk_mul_f32 {pr(G,r)}, {pr(G,r)}, s[{S_P2}:{S_P2+1}]"),
        grp(lambda r: f"v_exp_f32 v{G+r}, v{G+r}", 8, ''),
        grp(lambda r: f"v_fma_f32 v{G+r}, v{F+r}, v{G+r}, v{F+r}", 4, '', lambda r: f"v_pk_fma_f32 {pr(G,r)}, {pr(F,r)}, {pr(G,r)}, {pr(F,r)}"),
        grp(lambda r: f"v_rcp_f32 v{G+r}, v{G+r}", 8, ''),
        grp(lambda r: f"v_fma_f32 v{G+r}, -abs(v{F+r}), v{G+r}, v{G+r}", 4, ''),
    ]
    l = []
    for gi, (_, txts, cost, k, pks) in enumerate(gs):
        for r, t in enumerate(txts):
            l.append((t, cost, k, f, (pks[r // 2] if pks and r % 2 == 0 else None)))
    l.append((f"v_cvt_pk_bf16_f32 v{P}, v{G}, v{G+1}", 4, '', f, None))
    l.append((f"v_cvt_pk_bf16_f32 v{P+1}, v{G+2}, v{G+3}", 4, '', f, None))
    if A.xst: l.append((f"ds_write_b64 v{VO0}, v[{P}:{P+1}] offset:{f*256}", 4, '', f, None))
    elif f & 1: l += [(t, c_, k, f, None) for (t, c_, k) in store_ops(f, areg(f & ~1, 0))]
    return l

L = A.lag
gl = [(f, 0) for f in range(L+1)]
for f in range(8):
    gl.append((f, 1))
    if f + L + 1 < 8: gl.append((f + L + 1, 0))
seqT = order('a' if A.tord == 'a' else 'A')
rd7 = reads_for(1, 1, 1, seqT)
last7 = {}
for i, (key, _) in enumerate(rd7): last7[key] = i
lab("L_tail")
stamp_issue()
e("s_waitcnt lgkmcnt(0)")
e(f"v_add_u32 v{VWF}, s{S_WP}, v{VWF}"); e(f"v_add_u32 v{VWG}, s{S_WP}, v{VWG}")
e("s_barrier")
stamp_commit()
if not A.xst: e(f"s_movk_i32 s{S_IT}, 4096")
ms = []
for (f, s) in gl:
    if A.tord == 'a':
        for c in range(2):
            for t in range(5): ms.append((s, f, c, t))
    else:
        for t in range(5):
            for c in range(2): ms.append((s, f, c, t))
issued = 0; done = -1
pend = []
wrote = {}
fin = set()
nxt = 0
syncs = []
def states_since(pos):
    n = 0
    for l in out[pos+1:]:
        m = re.match(r"\s*s_nop (\d+)", l)
        n += (int(m.group(1)) + 1) if m else 1
    return n
def emit_epi(op, txt=None):
    k, f = op[2], op[3]
    if k:
        d = states_since(wrote[(f, 0 if k == 'F' else 1)])
        if d < 8: e(f"s_nop {8-d-1}")
    tx = txt or op[0]
    if 's' in A.dbg and ('buffer_store' in tx or 'permlane' in tx): return
    if 'p' in A.dbg and ('permlane' in tx): return
    if 't' in A.dbg and ('v_exp' in tx or 'v_rcp' in tx): tx = "v_mov_b32 v254, v255"
    if 'n' in A.dbg and not ('v_exp' in tx or 'v_rcp' in tx): tx = "v_mov_b32 v254, v255"
    if 'm' in A.dbg: tx = "v_mov_b32 v254, v255"
    e(tx)
def ready(op):
    k, f = op[2], op[3]
    if not k: return True
    c = 0 if k == 'F' else 1
    return (f, c) in fin and states_since(wrote[(f, c)]) >= 8
def need_of(f, c, t): return max(last7[('w', t, c)], last7[('x', f+t)])
for g, (s, f, c, t) in enumerate(ms):
    if s == 1:
        need = need_of(f, c, t)
        assert need < issued, (g, need, issued)
        if need > done:
            la = need
            for (s2, f2, c2, t2) in ms[g+1:g+3]:
                if s2 == 1 and need_of(f2, c2, t2) < issued: la = max(la, need_of(f2, c2, t2))
            n = min(issued - 1 - la, 15)
            e(f"s_waitcnt lgkmcnt({n})"); done = issued - 1 - n
    e(mf(s, f, c, t))
    wrote[(f, c)] = len(out) - 1
    if s == 1 and t == 4: fin.add((f, c))
    k = 0
    while issued < 32 and k < (2 if issued < 25 else 1):
        e(rd7[issued][1]); issued += 1; k += 1
    quota = A.quota
    if syncs and g - syncs[0] >= A.sd:
        syncs.pop(0); e("s_waitcnt lgkmcnt(0)"); e("s_barrier"); quota = 0
    while quota > 0:
        if not pend:
            if nxt < 8 and (nxt, 0) in fin and (A.epi == 9 or (nxt, 1) in fin):
                pend = epi9(nxt) if A.epi == 9 else epi10(nxt); nxt += 1
            else: break
        if pend[0][1] > quota or not ready(pend[0]): break
        op = pend.pop(0); emit_epi(op); quota -= op[1]
        if op[0].startswith("ds_write") and op[3] & 1: syncs.append(g)
stamp_issue()
if A.epi == 9:
    rest = list(pend)
    for ff in range(nxt, 8): rest += epi9(ff)
    i = 0
    syncs = [0 for _ in syncs]
    while i < len(rest):
        op = rest[i]
        if syncs and i - syncs[0] >= A.se:
            syncs.pop(0); e("s_waitcnt lgkmcnt(0)"); e("s_barrier")
        if A.pk and op[4]:
            emit_epi(op, op[4]); i += 2
        else:
            emit_epi(op); i += 1
        if op[0].startswith("ds_write") and op[3] & 1: syncs.append(i)
    for _ in syncs:
        e("s_waitcnt lgkmcnt(0)"); e("s_barrier")
else:
    for op in pend: emit_epi(op)
    for ff in range(nxt, 8):
        for op in epi10(ff, A.pk): emit_epi(op)
if DIAG:
    e("s_waitcnt lgkmcnt(0)"); stamp_commit(10)
    stamp_now(11)
    e("s_waitcnt vmcnt(0)")
    lab("L_diag")
    e("s_load_dwordx2 s[58:59], s[0:1], 32")
    e("s_waitcnt vmcnt(0) lgkmcnt(0)")
    stamp_now(12)
    e("s_barrier")
    e(f"v_mbcnt_lo_u32_b32 v0, -1, 0")
    e(f"v_mbcnt_hi_u32_b32 v0, -1, v0")
    e("s_mov_b32 s52, s58"); e("s_mov_b32 s53, s59"); e("s_mov_b32 s54, 0x100000"); e("s_mov_b32 s55, 0x20000")
    e("v_mov_b32 v1, 0")
    vals = [f"s{SC0+i}" for i in range(NST)] + [f"s{SR0+i}" for i in range(NST)]
    for i, s in enumerate(vals):
        e(f"v_mov_b32 v2, {s}")
        e(f"v_cmp_eq_u32 vcc, {i}, v0")
        e("s_nop 1")
        e("v_cndmask_b32 v1, v1, v2, vcc")
    e("s_lshl_b32 s56, s%d, 3" % (48 if A.ntx else 2))
    e("s_lshr_b32 s49, s3, 6")
    e("s_add_u32 s56, s56, s49")
    e("s_lshl_b32 s56, s56, 7")
    e("v_lshlrev_b32 v3, 2, v0")
    e("v_cmp_gt_u32 vcc, 32, v0")
    e("s_and_saveexec_b64 s[4:5], vcc")
    e("buffer_store_dword v1, v3, s[52:55], s56 offen")
    e("s_waitcnt vmcnt(0)")
if A.dly:
    mk, n = map(int, A.dly.split(','))
    e("s_and_b32 s4, s2, 7"); e("s_lshl_b32 s4, 1, s4"); e(f"s_and_b32 s4, s4, {mk}"); e("s_cbranch_scc0 L_end")
    e(f"s_mov_b32 s4, {n}"); lab("L_dly"); e("s_sub_u32 s4, s4, 1"); e("s_cbranch_scc0 L_dly")
lab("L_end")
e("s_endpgm")
if DIAG: ldiag()
lab("L_cend")
if A.pad: out.append(f".fill {A.pad//4}, 4, 0xbf810000")

footer = f"""
.section .rodata,"a"
.p2align 6
.amdhsa_kernel {NAME}_kernel
  .amdhsa_next_free_vgpr 256
  .amdhsa_next_free_sgpr 96
  .amdhsa_accum_offset 256
  .amdhsa_group_segment_fixed_size 0
  .amdhsa_kernarg_size 40
  .amdhsa_user_sgpr_count 2
  .amdhsa_user_sgpr_kernarg_segment_ptr 1
  .amdhsa_system_sgpr_workgroup_id_x 1
.end_amdhsa_kernel
"""

def labels(text):
    import subprocess, tempfile, os
    d = tempfile.mkdtemp()
    open(d + "/a.s", "w").write(text)
    subprocess.check_call(["clang", "-x", "assembler", "-target", "amdgcn-amd-amdhsa", "-mcpu=gfx950", "-c", d + "/a.s", "-o", d + "/a.o"])
    o = subprocess.check_output(["llvm-objdump", "-t", d + "/a.o"], text=True)
    r = {}
    for l in o.splitlines():
        p = l.split()
        if len(p) >= 5 and p[-1].startswith("L_"): r[p[-1]] = int(p[0], 16)
    return r
text = header + "\n".join(out) + "\n" + footer
lb = labels(text)
sys.stderr.write("ldend %d consumer %d loop %d end %d\n" % (lb["L_ldend"], lb["L_consumer"], lb["L_loop"], lb["L_cend"]))
if A.cw:
    need = lb["L_pc"] + 255 * A.cw + 64 - lb["L_cend"]
    if need > 0: text = text.replace("L_cend:\n", "L_cend:\n.fill %d, 4, 0xbf810000\n" % ((need + 3) // 4))
    else: sys.stderr.write("WARNING: warm range ends %d bytes before the code end\n" % (-need))
sys.stdout.write(text)
```

```python
import sys, argparse, re

ap = argparse.ArgumentParser()
ap.add_argument("--diag", action="store_true")
ap.add_argument("--loader", default="w x w b10 x b5 w b0 r w x b5 w b0 w x b5 r w b0 w b0")
ap.add_argument("--store", default="nt", help="store cache flags")
ap.add_argument("--order", default="a", help="main-step MFMA order")
ap.add_argument("--bar", type=int, default=40, help="MFMA index of the mid-step barrier")
ap.add_argument("--rdend", type=int, default=74, help="last MFMA gap carrying a read")
ap.add_argument("--lag", type=int, default=1)
ap.add_argument("--xflag", default="nt", help="cache flags on X DMA")
ap.add_argument("--wflag", default="", help="cache flags on W DMA")
ap.add_argument("--pk", type=int, default=1)
ap.add_argument("--quota", type=int, default=8)
ap.add_argument("--pad", type=int, default=0)
ap.add_argument("--cw", type=int, default=0, help="code warm stride (bytes per lane, 0=off)")
ap.add_argument("--epi", type=int, default=9)
ap.add_argument("--tord", default="a", help="tail group order: a (chain) | t")
ap.add_argument("--dbg", default="", help="diagnostic tail edits: s=no store/permlane in gaps, t=trans->mov, w=waits right after MFMA")
ap.add_argument("--pfw", default="", help="p0:n vector L2 prefetch of W phases")
ap.add_argument("--pfx", default="", help="c0:n vector L2 prefetch of X blocks")
ap.add_argument("--pfpos", default="first", help="first | op P in loader")
ap.add_argument("--rot", type=int, default=1)
ap.add_argument("--ntx", type=int, default=0, help="xor wg id with this (diagnostic remap)")
ap.add_argument("--cpf", default="", help="p0:n[:c0[:nx]] cooperative prefetch: waves<n fetch W phase p0+w, wave 3 fetches X chunks c0..")
ap.add_argument("--ts", type=int, default=0, help="tap-stream W routine (ops wN = N taps)")
ap.add_argument("--pf1", type=int, default=0, help="prefetch own tap of W1 first")
ap.add_argument("--wrot", type=int, default=0, help="tap rotation by m-tile")
ap.add_argument("--dly", default="", help="DIAGNOSTIC mask,n : end delay loop for xcds in mask")
ap.add_argument("--rotl", default="", help="8 digits: rotation per wg&7")
ap.add_argument("--cpx", type=int, default=0, help="consumer scalar prefetch of X1: n loads per wave")
ap.add_argument("--cpw", default="", help="consumer scalar prefetch of W: phase:n loads per wave")
ap.add_argument("--cprog", default="", help="consumer scalar prefetch program: wN xN k B")
ap.add_argument("--wfix", type=int, default=0)
ap.add_argument("--wfree", type=int, default=0)
ap.add_argument("--pre", type=int, default=0)
ap.add_argument("--xst", type=int, default=0, help="stores through LDS by the loader waves")
ap.add_argument("--sd", type=int, default=5, help="MFMAs between ds_write and its barrier")
ap.add_argument("--se", type=int, default=20, help="exposed part: ops between ds_write and its barrier")
ap.add_argument("--store2", default="nt")
ap.add_argument("--nb", type=int, default=4, help="loop count of the O loop")
ap.add_argument("--bat", default="1357", help="groups after which a batch barrier is placed")
ap.add_argument("--bq", type=int, default=0)
ap.add_argument("--tau0", type=int, default=0)
ap.add_argument("--pb", type=int, default=0, help="DIAG: extra stamped barriers before B0")
ap.add_argument("--xrot", type=int, default=0, help="X instr rotation by n-tile")
A = ap.parse_args()
if A.cprog: A.cpw = '1:10'
DIAG = A.diag

NAME = "standalone__autoregressive_conv_wavernn__speech"
XBLK = 1040
XSLOT = 20480
WBASE = 2 * XSLOT
WSLOT = 40960
LDS_BYTES = WBASE + 3 * WSLOT

out = []
def e(s): out.append("    " + s)
def lab(s): out.append(s + ":")

header = f"""; x (2,4000,256) bf16 @0, w (5,256,512) bf16 @8, out (2,4000,256) bf16 @16, debug @24, ws @32
; @launch grid=(256,1,1) block=(512,1,1) lds={LDS_BYTES}
.amdgcn_target "amdgcn-amd-amdhsa--gfx950"
.text
.globl {NAME}_kernel
.p2align 8
.type {NAME}_kernel,@function
{NAME}_kernel:
"""
SX, SW, SO = 12, 16, 20
NST = 16
SC0, SR0 = 60, 76
def stamp_issue():
    if DIAG:
        e("s_memtime s[50:51]"); e("s_memrealtime s[52:53]")
def stamp_commit(idx=None):
    if DIAG:
        if idx is None:
            e(f"s_movreld_b32 s{SC0}, s50"); e(f"s_movreld_b32 s{SR0}, s52"); e("s_add_u32 m0, m0, 1")
        else:
            e(f"s_mov_b32 s{SC0+idx}, s50"); e(f"s_mov_b32 s{SR0+idx}, s52")
def stamp_now(idx):
    if DIAG:
        stamp_issue(); e("s_waitcnt lgkmcnt(0)"); stamp_commit(idx)

if DIAG:
    e("s_memtime s[54:55]"); e("s_memrealtime s[56:57]")
e(f"s_load_dwordx2 s[{SW}:{SW+1}], s[0:1], 8")
e(f"s_load_dwordx2 s[{SX}:{SX+1}], s[0:1], 0")
e("v_readfirstlane_b32 s3, v0")
e("s_lshr_b32 s28, s2, 8")
e("s_cbranch_scc1 L_end0")
if A.ntx: e("s_mov_b32 s48, s2"); e(f"s_xor_b32 s2, s2, {A.ntx}")
e("s_bitcmp1_b32 s3, 8")
e("s_cbranch_scc1 L_consumer")

sR, sT, sRX, sRW, sB, sMX, sS, sMW, sK, sO, sC = 20, 21, 22, 23, 24, 25, 26, 27, 28, 29, 30
sTau, sWS, sT1 = 31, 36, 37
RET, PC = 32, 34
VX, VW, VXT, VW2 = 3, 5, 7, 10
e("v_lshrrev_b32 v2, 3, v0")
e("v_lshrrev_b32 v4, 4, v0")
e(f"s_and_b32 s{sR}, s2, 3")
e(f"s_lshr_b32 s{sT}, s2, 5")
e("v_bfi_b32 v4, 6, v2, v4")
if A.wrot:
    e(f"s_mul_i32 s{sTau}, s{sT}, {0 if A.tau0 else 5}")
e(f"s_lshl3_add_u32 s{sT}, s{sR}, s{sT}")
e("v_xor_b32 v4, v4, v0")
e(f"s_mul_i32 s{sT}, s{sT}, 64000")
e("v_bfi_b32 v4, 14, v4, v0")
e(f"s_addk_i32 s{sT}, 0xf000")
e("v_and_b32 v6, 7, v4")
if A.rotl:
    lit = sum(int(ch) << (4*i) for i, ch in enumerate(A.rotl))
    e(f"s_lshl_b32 s{sR}, s2, 2"); e(f"s_lshr_b32 s{sR}, 0x{lit:x}, s{sR}"); e(f"s_and_b32 s{sR}, s{sR}, 3")
elif A.rot == 1: pass
elif A.rot == 3: e(f"s_min_u32 s{sR}, s{sR}, 2")
elif A.rot == 4: e(f"s_and_b32 s{sR}, s2, 1")
elif A.rot == 5: e(f"s_and_b32 s{sR}, s2, 2")
elif A.rot == 6: e(f"s_lshr_b32 s{sR}, s{sR}, 1")
elif A.rot == 7: e(f"s_andn2_b32 s{sR}, 1, s2")
elif A.rot == 0: e(f"s_mov_b32 s{sR}, 0")
e(f"s_lshl_b32 s{sRX}, s{sR}, 7")
e(f"s_lshl_b32 s{sRW}, s{sR}, 16")
e("v_lshrrev_b32 v7, 3, v4")
e(f"s_and_b32 s{sB}, s2, 24")
e(f"s_lshl4_add_u32 s{sRW}, s{sB}, s{sRW}")
CPF = list(map(int, A.cpf.split(':'))) if A.cpf else None
sP, sPX = 38, 39
if CPF and len(CPF) > 2:
    e(f"s_lshl_b32 s{sPX}, s{sB}, 11")
    e(f"s_add_u32 s{sPX}, s{sPX}, s{sT}")
e("v_lshlrev_b32 v7, 9, v7")
e(f"s_mov_b32 s{SX+2}, 2048000")
e("s_bitcmp1_b32 s2, 2")
e(f"s_cselect_b32 s{sB}, s{SX+2}, 0")
e(f"v_lshl_add_u32 v{VW}, v6, 4, v7")
e(f"s_lshl_b32 s{SX+3}, 1, 17")
e(f"s_lshl_b32 s{SW+3}, 1, 17")
e(f"s_lshl_b32 s{SW+2}, 5, 18")
e("v_and_b32 v1, 7, v0")
e(f"s_movk_i32 s{sK}, 16384")
e(f"s_lshl_b32 s{sWS}, 5, 13")
if CPF:
    e(f"s_lshr_b32 s{sP}, s2, 3")
    e("v_lshlrev_b32 v8, 7, v1")
    e(f"s_lshl1_add_u32 s{sP}, s{sP}, s3")
    e("v_and_b32 v9, 7, v2")
    e(f"s_add_u32 s{sP}, s{sP}, s{sRX}")
    if CPF[0]: e(f"s_add_u32 s{sP}, s{sP}, {64*CPF[0]}")
    e("v_lshl_add_u32 v8, v9, 18, v8")
    e(f"s_lshl_b32 s{sP}, s{sP}, 9")
    if A.rot == 1: e(f"s_bitset0_b32 s{sP}, 18")
    if len(CPF) > 2:
        e("v_and_b32 v9, 31, v0")
        e(f"v_lshl_add_u32 v9, v9, 9, s{sPX}")
        e("v_and_b32 v11, 32, v0")
        e("v_lshl_add_u32 v9, v11, 2, v9")
PN = [o for o in A.loader.split() if o[0] == 'P']
if PN:
    e(f"s_lshr_b32 s{sP}, s2, 3")
    e("v_lshlrev_b32 v8, 7, v1")
    e(f"s_lshl1_add_u32 s{sP}, s{sP}, s{sRX}")
    e("v_lshl_add_u32 v8, v2, 18, v8")
    if PN[0] == 'P': e(f"s_add_u32 s{sP}, s{sP}, 64")
    e(f"s_lshl_b32 s{sP}, s{sP}, 9")
if any(o[0] == 'Q' for o in A.loader.split()):
    e("s_and_b32 s42, s2, 24"); e("s_lshl_b32 s42, s42, 5"); e("s_add_u32 s42, s42, s3"); e("s_mulk_i32 s42, 72"); e(f"s_add_u32 s42, s42, s{sT}")
    e("v_and_b32 v9, 63, v0"); e("v_lshl_add_u32 v9, v9, 9, s42")
e(f"v_lshl_add_u32 v1, v1, 4, s{sT}")
e(f"s_lshr_b32 s{sMX}, s3, 6")
if A.wrot:
    e(f"s_and_b32 s{sTau}, s{sTau}, -8")
    e(f"s_add_u32 s{sMW}, s{sMX}, s{sTau}")
    e(f"s_lshl_b32 s{sMW}, s{sMW}, 10")
    e(f"s_add_u32 s{sMW}, s{sMW}, s{sWS}")
    e(f"s_lshl_b32 s{sTau}, s{sTau}, 15")
else:
    e(f"s_lshl4_add_u32 s{sMW}, s3, s{sWS}")
e(f"s_mulk_i32 s{sMX}, {XBLK}")
e(f"v_lshl_add_u32 v{VX}, v2, 9, v1")
e(f"v_add_u32 v{VW2}, s{sK}, v{VW}")
ops = A.loader.split()
def emit_x():
    lab("L_x")
    if not A.xrot:
        e(f"s_mov_b32 m0, s{sMX}")
        e(f"v_mov_b32 v{VXT}, v{VX}")
        e(f"s_mov_b32 s{sC}, 3")
        lab("L_xl")
        e(f"buffer_load_dwordx4 v{VXT}, s[{SX}:{SX+3}], s{sRX} offen {A.xflag} lds")
        e(f"s_addk_i32 m0, {4*XBLK}")
        e(f"v_add_u32 v{VXT}, s{sK}, v{VXT}")
        e(f"s_sub_u32 s{sC}, s{sC}, 1")
        e("s_cbranch_scc0 L_xl")
    else:
        e(f"s_mov_b32 s{sC}, s{sNT}")
        lab("L_xl")
        e(f"s_mul_i32 s{sT1}, s{sC}, {4*XBLK}")
        e(f"v_lshl_add_u32 v{VXT}, s{sC}, 14, v{VX}")
        e(f"s_add_u32 m0, s{sT1}, s{sMX}")
        e(f"s_add_u32 s{sC}, s{sC}, 1")
        e(f"buffer_load_dwordx4 v{VXT}, s[{SX}:{SX+3}], s{sRX} offen {A.xflag} lds")
        e(f"s_and_b32 s{sC}, s{sC}, 3")
        e(f"s_cmp_lg_u32 s{sC}, s{sNT}")
        e("s_cbranch_scc1 L_xl")
        e(f"s_add_u32 m0, s{sMX}, {16*XBLK}")
        e(f"v_lshl_add_u32 v{VXT}, s{sK}, 2, v{VX}")
    e("s_bfm_b64 exec, 40, 0")
    e(f"buffer_load_dwordx4 v{VXT}, s[{SX}:{SX+3}], s{sRX} offen {A.xflag} lds")
    e("s_mov_b64 exec, -1")
    e(f"s_xor_b32 s{sMX}, s{sMX}, {XSLOT}")
    e(f"s_addk_i32 s{sRX}, 128")
    e(f"s_bitset0_b32 s{sRX}, 9")
    e(f"s_setpc_b64 s[{RET}:{RET+1}]")
def emit_w_ts(first):
    lab("L_w")
    e(f"s_mov_b32 m0, s{sMW}")
    if first: e("s_waitcnt lgkmcnt(0)")
    lab("L_wl")
    e(f"buffer_load_dwordx4 v{VW}, s[{SW}:{SW+3}], s{sO} offen {A.wflag} lds")
    e("s_addk_i32 m0, 4096")
    e(f"s_lshl4_add_u32 s{sT1}, s{sK}, s{sO}")
    e(f"buffer_load_dwordx4 v{VW2}, s[{SW}:{SW+3}], s{sO} offen {A.wflag} lds")
    e("s_addk_i32 m0, 4096")
    e(f"s_sub_u32 s{sO}, s{sT1}, s{SW+2}")
    e(f"s_cselect_b32 s{sO}, s{sT1}, s{sO}")
    e(f"s_cselect_b32 s{sT1}, 0, s{sWS}")
    e(f"s_sub_u32 m0, m0, s{sT1}")
    e(f"s_cmp_lg_u32 s{sO}, s{sS}")
    e("s_cbranch_scc1 L_wn")
    e(f"s_add_u32 m0, m0, s{sWS}")
    e(f"s_lshl1_add_u32 s{sRW}, s{sK}, s{sRW}")
    e(f"s_bitset0_b32 s{sRW}, 18")
    e(f"s_add_u32 s{sS}, s{sRW}, s{sTau}")
    e(f"s_mov_b32 s{sO}, s{sS}")
    lab("L_wn")
    e(f"s_sub_u32 s{sC}, s{sC}, 1")
    e("s_cbranch_scc0 L_wl")
    e(f"s_mov_b32 s{sMW}, m0")
    e(f"s_setpc_b64 s[{RET}:{RET+1}]")
sNT = 40
sSX = 41
if A.xrot: e(f"s_bfe_u32 s{sNT}, s2, 0x20003")
if A.ts:
    assert A.wrot
    e(f"s_add_u32 s{sS}, s{sRW}, s{sTau}")
    e(f"s_mov_b32 s{sO}, s{sS}")
    e(f"s_getpc_b64 s[{RET}:{RET+1}]")
    lab("L_pc2")
    e(f"s_add_u32 s{RET}, s{RET}, L_sched-L_pc2")
    e(f"s_addc_u32 s{RET+1}, s{RET+1}, 0")
    if ops[0][0] == 'w':
        e(f"s_mov_b32 s{sC}, {int(ops[0][1:] or 5)-1}")
        emit_w_ts(True); emit_x()
    else:
        e("s_waitcnt lgkmcnt(0)")
        e(f"s_add_u32 s{SX}, s{SX}, s{sB}")
        e(f"s_addc_u32 s{SX+1}, s{SX+1}, 0")
        emit_x(); emit_w_ts(False)
else:
    assert ops[0] == 'x'
    e(f"s_getpc_b64 s[{RET}:{RET+1}]")
    lab("L_pc2")
    e(f"s_add_u32 s{RET}, s{RET}, L_sched-L_pc2")
    e(f"s_addc_u32 s{RET+1}, s{RET+1}, 0")
    if A.pf1:
        if A.wrot: e(f"s_add_u32 s{sO}, s{sRW}, s{sTau}")
        e(f"s_lshl1_add_u32 s{sO}, s{sK}, s{sO if A.wrot else sRW}")
    e("s_waitcnt lgkmcnt(0)")
    if A.pf1:
        e(f"buffer_load_dword v8, v{VW}, s[{SW}:{SW+3}], s{sO} offen")
        e(f"buffer_load_dword v9, v{VW2}, s[{SW}:{SW+3}], s{sO} offen")
    e(f"s_add_u32 s{SX}, s{SX}, s{sB}")
    e(f"s_addc_u32 s{SX+1}, s{SX+1}, 0")
    if CPF:
        n = CPF[1]
        if n < 4:
            e(f"s_cmpk_ge_u32 s3, {64*n}")
            e("s_cbranch_scc1 L_pfx")
        e(f"buffer_load_dword v12, v8, s[{SW}:{SW+3}], s{sP} offen")
        if len(CPF) > 2:
            e("s_branch L_x")
            lab("L_pfx")
            if n < 3:
                e(f"s_cmpk_lt_u32 s3, 192")
                e("s_cbranch_scc1 L_x")
            if len(CPF) > 3 and CPF[3] == 1: e("s_bfm_b64 exec, 32, 0")
            e(f"buffer_load_dword v12, v9, s[{SX}:{SX+3}], s{sRX} offen offset:{128*CPF[2]} {A.xflag}")
            if len(CPF) > 3 and CPF[3] == 1: e("s_mov_b64 exec, -1")
        else:
            lab("L_pfx")
    emit_x()
    lab("L_w")
    e(f"s_mov_b32 m0, s{sMW}")
    if A.wrot:
        e(f"s_add_u32 s{sS}, s{sRW}, s{sTau}")
        e(f"s_mov_b32 s{sO}, s{sS}")
    else:
        e(f"s_mov_b32 s{sO}, s{sRW}")
    lab("L_wl")
    e(f"buffer_load_dwordx4 v{VW}, s[{SW}:{SW+3}], s{sO} offen {A.wflag} lds")
    e("s_addk_i32 m0, 4096")
    if not A.wrot:
        e("s_nop 0")
        e(f"buffer_load_dwordx4 v{VW2}, s[{SW}:{SW+3}], s{sO} offen {A.wflag} lds")
        e("s_addk_i32 m0, 4096")
        e(f"s_lshl4_add_u32 s{sO}, s{sK}, s{sO}")
        e(f"s_cmp_lt_u32 s{sO}, s{SW+2}")
        e("s_cbranch_scc1 L_wl")
    else:
        e(f"s_lshl4_add_u32 s{sT1}, s{sK}, s{sO}")
        e(f"buffer_load_dwordx4 v{VW2}, s[{SW}:{SW+3}], s{sO} offen {A.wflag} lds")
        e("s_addk_i32 m0, 4096")
        e(f"s_sub_u32 s{sO}, s{sT1}, s{SW+2}")
        e(f"s_cselect_b32 s{sO}, s{sT1}, s{sO}")
        e(f"s_cselect_b32 s{sT1}, 0, s{sWS}")
        e(f"s_sub_u32 m0, m0, s{sT1}")
        e(f"s_cmp_lg_u32 s{sO}, s{sS}")
        e("s_cbranch_scc1 L_wl")
    e(f"s_add_u32 s{sMW}, s{sMW}, s{sWS}")
    e(f"s_lshl1_add_u32 s{sRW}, s{sK}, s{sRW}")
    e(f"s_bitset0_b32 s{sRW}, 18")
    e(f"s_setpc_b64 s[{RET}:{RET+1}]")
lab("L_sched")
if A.ts and ops[0][0] == 'w':
    e(f"s_add_u32 s{SX}, s{SX}, s{sB}")
    e(f"s_addc_u32 s{SX+1}, s{SX+1}, 0")
used = {0, 12}
tused = set()
late = []
cur_out = out
def sched_ops(ops):
    for op in ops:
        k, a = op[0], op[1:]
        if k == 'x': e(f"s_call_b64 s[{RET}:{RET+1}], L_x")
        elif k == 'w':
            if A.ts: e(f"s_mov_b32 s{sC}, {int(a or 5)-1}")
            e(f"s_call_b64 s[{RET}:{RET+1}], L_w")
        elif k == 'r': e(f"s_sub_u32 s{sMW}, s{sMW}, {3*WSLOT}")
        elif k == 'b':
            e(f"s_waitcnt vmcnt({int(a)})"); e("s_barrier")
        elif k == 'B': e("s_barrier")
        elif k == 'P':
            e(f"buffer_load_dword v12, v8, s[{SW}:{SW+3}], s{sP} offen")
            if a: e(f"s_lshl1_add_u32 s{sP}, s{sK}, s{sP}")
        elif k == 'Q':
            e("s_bfm_b64 exec, 9, 0"); e(f"buffer_load_dword v12, v9, s[{SX}:{SX+3}], s{sRX} offen {A.xflag}"); e("s_mov_b64 exec, -1")
        elif k == 'C':
            sh = int(a or 7)
            e(f"s_getpc_b64 s[{PC}:{PC+1}]")
            lab("L_pcC")
            e(f"s_add_u32 s{PC}, s{PC}, L_tail-L_pcC")
            e(f"s_addc_u32 s{PC+1}, s{PC+1}, 0")
            e(f"v_lshlrev_b32 v13, {sh}, v0")
            e(f"v_min_u32 v13, L_end-L_tail, v13")
            e(f"global_load_dword v12, v13, s[{PC}:{PC+1}]")
        elif k == 'Z':
            e(f"s_and_b32 s{sSX}, s2, 24"); e(f"s_lshl_b32 s{sSX}, s{sSX}, 5"); e(f"s_add_u32 s{sSX}, s{sSX}, s3")
            e(f"s_mulk_i32 s{sSX}, 72"); e(f"s_add_u32 s{sSX}, s{sSX}, s{sT}"); e(f"s_max_i32 s{sSX}, s{sSX}, 0")
        elif k == 'S':
            e(f"s_add_u32 s{sT1}, s{sSX}, s{sRX}")
            for i in range(int(a[0]), int(a[1])): e(f"s_buffer_load_dwordx2 s[46:47], s[{SX}:{SX+3}], s{sT1} offset:{i*512+60}")
        elif k == 'y': e("s_load_dwordx2 s[8:9], s[0:1], 16")
        elif k == 'Y':
            e("v_lshrrev_b32 v14, 5, v0"); e("v_and_b32 v15, 3, v2"); e("v_lshl_add_u32 v15, v14, 4, v15")
            e("v_xor_b32 v14, v14, v0"); e("v_and_b32 v14, 7, v14"); e("v_lshlrev_b32 v14, 4, v14"); e("v_lshl_add_u32 v14, v15, 7, v14")
            e("v_and_b32 v16, 7, v0"); e("v_lshlrev_b32 v16, 4, v16"); e("v_lshl_add_u32 v15, v15, 9, v16")
            e("s_and_b32 s4, s2, 24"); e(f"s_lshl4_add_u32 s4, s4, s{sT}"); e("s_addk_i32 s4, 4096"); e("v_add_u32 v15, s4, v15")
            e(f"s_add_u32 s10, s{sT}, {4096+64000}"); e(f"s_mov_b32 s11, s{SX+3}"); e(f"s_mov_b32 s{sC}, {A.nb-1}")
            e("s_movk_i32 s5, 512"); e("s_movk_i32 s6, 2048")
            e("s_waitcnt lgkmcnt(0)"); e(f"s_add_u32 s8, s8, s{sB}"); e("s_addc_u32 s9, s9, 0")
        elif k == 'O':
            lab("L_o")
            e("s_barrier"); e("ds_read_b128 v[16:19], v14"); e("v_add_u32 v14, s5, v14"); e(f"s_sub_u32 s{sC}, s{sC}, 1"); e("s_waitcnt lgkmcnt(0)")
            e(f"buffer_store_dwordx4 v[16:19], v15, s[8:11], 0 offen {A.store}"); e("v_add_u32 v15, s6, v15"); e("s_cbranch_scc0 L_o")
        elif k == 'o':
            n = int(a or 1)
            e("s_barrier")
            for i in range(n): e(f"ds_read_b128 v[{16+4*i}:{19+4*i}], v14 offset:{512*i}")
            for i in range(n):
                e(f"s_waitcnt lgkmcnt({n-1-i})")
                e(f"buffer_store_dwordx4 v[{16+4*i}:{19+4*i}], v15, s[8:11], 0 offen offset:{2048*i} {A.store2}")
        elif k == 'q':
            for h in range(2):
                if h == 0: e("s_mov_b32 exec_lo, 0xffff"); e("s_mov_b32 exec_hi, exec_lo")
                else: e("s_not_b64 exec, exec")
                e("s_barrier"); e(f"ds_read_b128 v[16:19], v14"); e("s_waitcnt lgkmcnt(0)")
                e(f"buffer_store_dwordx4 v[16:19], v15, s[8:11], 0 offen {A.store}")
            if a == '1':
                e("s_mov_b64 exec, -1"); e("v_add_u32 v14, s5, v14"); e("v_add_u32 v15, s6, v15")
        elif k == 'T':
            sh = int((a or '9').rstrip('ns')); fl = {'n': 'nt', 's': 'sc1'}.get(a[-1:], '')
            e(f"v_lshl_add_u32 v20, v0, {sh}, s4"); e(f"buffer_load_dword v21, v20, s[8:11], 0 offen {fl}")
        elif k == 't':
            if DIAG: e(f"s_memtime s[{60+2*int(a)}:{61+2*int(a)}]"); tused.add(int(a))
        elif k == 'k': e("s_waitcnt lgkmcnt(0)")
        elif k == 'v': e(f"s_waitcnt vmcnt({int(a)})")
        elif k == 's': stamp_now(int(a)); used.add(int(a))
        else: raise ValueError(op)
def sched_end():
    if DIAG: e("s_branch L_ldiag")
    else: e("s_endpgm")
if 'L' in ops:
    i = ops.index('L')
    sched_ops(ops[1:i]); e("s_branch L_late"); LATE = ops[i+1:]
else:
    sched_ops(ops[1:]); sched_end(); LATE = None
lab("L_end0")
e("s_endpgm")
lab("L_ldend")
def ldiag():
    lab("L_ldiag")
    if tused:
        e("s_waitcnt lgkmcnt(0)")
        for i in range(1, NST):
            if i in tused: e(f"s_mov_b32 s{SC0+i}, s{60+2*i}")
            else: e(f"s_mov_b32 s{SC0+i}, 0")
        for i in range(NST): e(f"s_mov_b32 s{SR0+i}, 0")
        e(f"s_mov_b32 s{SC0}, s54"); e(f"s_mov_b32 s{SR0}, s56")
        e("s_branch L_diag"); return
    e(f"s_mov_b32 s{SC0}, s54"); e(f"s_mov_b32 s{SR0}, s56")
    for i in range(NST):
        if i not in used: e(f"s_mov_b32 s{SC0+i}, 0"); e(f"s_mov_b32 s{SR0+i}, 0")
    e("s_branch L_diag")

out.append(".p2align 6")
lab("L_consumer")
S_T0, S_E0B, S_WAVE, S_BATCH = 24, 25, 26, 27
S_TMP = 28
S_IT = 36
S_DX, S_DW = 37, 38
S_C1, S_C2, S_MASK = 39, 40, 41
S_WP, S_WM2, S_WC = 42, 43, 44
XR = [0, 48]
WR = [96, 136]
ACC = 176
VXB, VWF, VWG, VO0, VO1, VO2 = 240, 241, 242, 243, 244, 245
TT, TU = 246, 250
S_WM, S_WN = S_TMP, S_TMP + 1
if not A.xst: e("s_load_dwordx2 s[8:9], s[0:1], 16")
if A.cpx or A.cpw:
    assert A.rot == 7
    e("s_and_b32 s24, s2, 3"); e("s_lshr_b32 s30, s2, 5"); e("s_lshl3_add_u32 s24, s24, s30"); e("s_mul_i32 s24, s24, 64000")
    e("s_and_b32 s25, s2, 24"); e("s_lshl_b32 s25, s25, 5"); e("s_add_u32 s25, s25, s3"); e("s_mulk_i32 s25, 72")
    e("s_add_u32 s25, s25, s24"); e(f"s_addk_i32 s25, {-(4096+18432) & 0xffff:#x}"); e("s_max_i32 s25, s25, 0")
    e("s_andn2_b32 s26, 1, s2"); e("s_lshl_b32 s27, s26, 7"); e("s_add_u32 s25, s25, s27")
    e(f"s_mov_b32 s{SX+2}, 2048000"); e("s_bitcmp1_b32 s2, 2"); e(f"s_cselect_b32 s28, s{SX+2}, 0"); e(f"s_lshl_b32 s{SX+3}, 1, 17")
    if A.cpw:
        ph, nw = map(int, A.cpw.split(':'))
        e("s_lshr_b32 s29, s2, 3"); e("s_lshl_b32 s29, s29, 8"); e("s_add_u32 s29, s29, s3"); e("s_addk_i32 s29, 0xff00")
        e("s_mul_i32 s29, s29, 20")
        e("s_lshr_b32 s30, s29, 15"); e("s_and_b32 s29, s29, 0x7fff"); e("s_lshl_b32 s30, s30, 18"); e("s_add_u32 s29, s29, s30")
        e("s_lshl_b32 s30, s26, 16"); e("s_add_u32 s29, s29, s30")
        e(f"s_lshl_b32 s{SW+3}, 1, 17"); e(f"s_lshl_b32 s{SW+2}, 5, 18")
    e("s_waitcnt lgkmcnt(0)")
    e(f"s_add_u32 s{SX}, s{SX}, s28"); e(f"s_addc_u32 s{SX+1}, s{SX+1}, 0")
    if A.cprog:
        for op in A.cprog.split():
            if op == 'k': e("s_waitcnt lgkmcnt(0)")
            elif op[0] == 'x':
                for i in range(9): e(f"s_buffer_load_dwordx2 s[46:47], s[{SX}:{SX+3}], s25 offset:{i*512+128*int(op[1:])+60}")
            elif op[0] == 'w':
                for i in range(10): e(f"s_buffer_load_dwordx2 s[46:47], s[{SW}:{SW+3}], s29 offset:{int(op[1:])*32768+i*128+60}")
            elif op[0] == 'B': e("s_barrier")
            elif op[0] == 'd': e(f"s_buffer_load_dword s46, s[{SX}:{SX+3}], s25 offset:{512*int(op[1:] or 0)}")
            elif op[0] == 'X':
                for i in range(int(op[1]), int(op[2])): e(f"s_buffer_load_dwordx2 s[46:47], s[{SX}:{SX+3}], s25 offset:{i*512+128+60}")
    else:
      for i in range(A.cpx): e(f"s_buffer_load_dwordx2 s[46:47], s[{SX}:{SX+3}], s25 offset:{i*512+128+60}")
      if A.cpw:
        for i in range(nw): e(f"s_buffer_load_dwordx2 s[46:47], s[{SW}:{SW+3}], s29 offset:{ph*32768+i*128+60}")
if LATE is not None:
    e("s_branch L_cons2")
    lab("L_late")
    sched_ops(LATE); sched_end()
    lab("L_cons2")
if DIAG:
    for i in range(NST): e(f"s_mov_b32 s{SC0+i}, 0"); e(f"s_mov_b32 s{SR0+i}, 0")
e("v_and_b32 v0, 63, v0")
e(f"s_bfe_u32 s{S_WN}, s3, 0x20006")
if not A.xst:
    e(f"s_and_b32 s{S_T0}, s2, 3")
    e(f"s_lshr_b32 s{S_TMP+2}, s2, 5")
    e(f"s_lshl3_add_u32 s{S_T0}, s{S_T0}, s{S_TMP+2}")
    e(f"s_mul_i32 s{S_T0}, s{S_T0}, 125")
    e(f"s_and_b32 s{S_E0B}, s2, 24")
    e(f"s_lshl_b32 s{S_E0B}, s{S_E0B}, 4")
    e(f"s_mov_b32 s{SO+2}, 2048000")
    e("s_bitcmp1_b32 s2, 2")
    e(f"s_cselect_b32 s{S_BATCH}, s{SO+2}, 0")
    e(f"s_mov_b32 s{SO+3}, 0x20000")
e("v_and_b32 v2, 15, v0")
e("v_lshrrev_b32 v3, 4, v0")
e("v_lshrrev_b32 v4, 1, v2")
e("v_and_b32 v5, 1, v2")
e(f"v_mul_u32_u24 v6, {2*XBLK}, v4")
e("v_lshl_add_u32 v6, v5, 7, v6")
e(f"v_lshl_add_u32 v{VXB}, v3, 4, v6")
e("v_bfe_u32 v6, v0, 2, 2")
e("v_lshl_add_u32 v7, v3, 3, v6")
e("v_lshlrev_b32 v7, 8, v7")
e(f"v_xor_b32 v8, s{S_WN}, v6")
e("v_lshl_add_u32 v7, v8, 5, v7")
e("v_and_b32 v9, 1, v3")
e("v_lshl_add_u32 v7, v9, 7, v7")
e("v_and_b32 v8, 3, v0")
e("v_lshl_add_u32 v7, v8, 3, v7")
e(f"v_add_u32 v{VWF}, {WBASE}, v7")
e("v_xor_b32 v7, 0x80, v7")
e(f"v_add_u32 v{VWG}, {WBASE}, v7")
if A.xst:
    e("v_lshl_add_u32 v6, v4, 4, v5"); e("v_lshrrev_b32 v8, 1, v3"); e(f"v_lshl_add_u32 v8, s{S_WN}, 1, v8"); e("v_xor_b32 v8, v8, v4")
    e("v_lshlrev_b32 v8, 4, v8"); e("v_lshl_add_u32 v6, v6, 7, v8"); e(f"v_lshl_add_u32 v{VO0}, v9, 3, v6")
else:
    e("v_lshl_add_u32 v6, v4, 4, v5")
    e("v_lshl_add_u32 v6, v9, 1, v6")
    e("v_cmp_lt_u32 vcc, 0x70, v6")
    e(f"v_add_u32 v6, s{S_T0}, v6")
    e("v_lshlrev_b32 v6, 9, v6")
    e("v_lshrrev_b32 v8, 1, v3")
    e("v_lshl_add_u32 v6, v8, 4, v6")
    e(f"s_lshl_b32 s{S_TMP+3}, s{S_WN}, 5")
    e(f"s_add_u32 s{S_TMP+3}, s{S_TMP+3}, s{S_E0B}")
    e(f"v_add_u32 v{VO0}, s{S_TMP+3}, v6")
    e("v_bfrev_b32 v7, 1")
e(f"s_mov_b32 s{S_DX}, {XSLOT}")
e(f"s_mov_b32 s{S_WP}, {WSLOT}")
e(f"s_mov_b32 s{S_WM2}, {-2*WSLOT & 0xffffffff}")
e(f"s_mov_b32 s{S_WC}, 0")
if not A.xst: e(f"v_cndmask_b32 v{VO2}, v{VO0}, v7, vcc")
for r in range(0, 64, 2):
    e(f"v_mov_b64 v[{ACC+r}:{ACC+r+1}], 0")
if A.epi == 8:
    e(f"s_mov_b32 s{S_C1}, 0xc038aa3b")
    e(f"s_mov_b32 s{S_MASK}, 0x4c000000")
    e("v_mov_b32 v254, 0xc1d00000")
    e("s_setreg_imm32_b32 hwreg(HW_REG_MODE, 8, 1), 0")
else:
    e(f"s_mov_b32 s{S_C1}, 0x4038aa3b")
    e(f"s_mov_b32 s{S_MASK}, 0x7fffffff")
e(f"s_mov_b32 s{S_C2}, 0xbfb8aa3b")
e(f"s_mov_b32 s{S_IT}, 0")
S_P1, S_P2, S_ONE = 30, 32, 34
for i, v in enumerate([f"s{S_C1}", f"s{S_C1}", f"s{S_C2}", f"s{S_C2}"] + ([f"s{S_MASK}"]*2 if A.epi == 8 else ["1.0", "1.0"])): e(f"s_mov_b32 s{30+i}, {v}")
if not (A.cpx or A.cpw) and (DIAG or not A.xst): e("s_waitcnt lgkmcnt(0)")
if DIAG:
    e(f"s_mov_b32 s{SC0}, s54"); e(f"s_mov_b32 s{SR0}, s56"); e("s_mov_b32 m0, 2")
if not A.xst:
    e(f"s_add_u32 s{SO}, s8, s{S_BATCH}")
    e(f"s_addc_u32 s{SO+1}, s9, 0")

def xreg(s, f): return XR[s] + 4*f
def wreg(s, t, c): return WR[s] + 8*t + 4*c
def areg(f, c): return ACC + 8*f + 4*c
def rd_x(s, f, ks):
    r = xreg(s, f)
    return (('x', f), f"ds_read_b128 v[{r}:{r+3}], v{VXB} offset:{(f>>2)*XBLK + (f&3)*256 + ks*64}")
def rd_w(s, t, c, u, wslot):
    r = wreg(s, t, c) + 2*u
    return (('w', t, c), f"ds_read_b64_tr_b16 v[{r}:{r+1}], v{VWG if c else VWF} offset:{t*8192 + u*1024}")
def mf(s, f, c, t):
    a = areg(f, c); w = wreg(s, t, c); x = xreg(s, f+t)
    return f"v_mfma_f32_16x16x32_bf16 v[{a}:{a+3}], v[{w}:{w+3}], v[{x}:{x+3}], v[{a}:{a+3}]"
def order(kind):
    if kind == 't': return [(f, c, t) for t in range(5) for c in range(2) for f in range(8)]
    if kind == 'a': return [(f, c, t) for f in range(8) for c in range(2) for t in range(5)]
    if kind == 'A': return [(f, c, t) for f in range(8) for t in range(5) for c in range(2)]
    raise ValueError(kind)
def reads_for(s, ks, wslot, seq):
    l = []; seen = set()
    for (f, c, t) in seq:
        if ('w', t, c) not in seen:
            seen.add(('w', t, c)); l += [rd_w(s, t, c, 0, wslot), rd_w(s, t, c, 1, wslot)]
        if ('x', f+t) not in seen:
            seen.add(('x', f+t)); l.append(rd_x(s, f+t, ks))
    assert len(l) == 32
    return l
def need_waits(seq, rd, upto):
    last = {}
    for i, (key, _) in enumerate(rd): last[key] = i
    w = {}; cur = 99
    for i, (f, c, t) in enumerate(seq[:upto]):
        n = len(rd) - 1 - max(last[('w', t, c)], last[('x', f+t)])
        n = min(n, 15)
        if n < cur: w[i] = n; cur = n
    return w
SEQ = order(A.order)
def step(cur, rd_cur, rd, pre=None):
    waits = need_waits(SEQ, rd_cur, A.bar)
    n = 80
    slots = {}
    span = A.rdend - A.bar + 1
    for k in range(32):
        g = A.bar + (k * span) // 32
        slots.setdefault(g, []).append(rd[k][1])
    for g in range(n):
        if g in waits: e(f"s_waitcnt lgkmcnt({waits[g]})")
        if g == A.bar - 10: stamp_issue()
        if g == A.bar:
            e("s_waitcnt lgkmcnt(0)")
            e("s_barrier")
            stamp_commit()
        f, c, t = SEQ[g]
        e(mf(cur, f, c, t))
        if pre and 12 <= g < 12 + len(pre): e(pre[g-12])
        for r in slots.get(g, []): e(r)

if DIAG and A.pre: stamp_now(13)
for i in range(A.pb):
    e("s_barrier"); stamp_now([9, 13, 14, 15][i])
e("s_barrier")
stamp_now(1)
rdA = reads_for(0, 0, 0, SEQ)
rdB = reads_for(1, 1, 1, SEQ)
for r in rdA: e(r[1])
out.append(".p2align 6")
lab("L_loop")
WADV = [f"s_add_u32 s{S_WC}, s{S_WC}, 1", f"s_cmp_eq_u32 s{S_WC}, 3", f"s_cselect_b32 s{S_DW}, s{S_WM2}, s{S_WP}", f"s_cselect_b32 s{S_WC}, 0, s{S_WC}",
        f"v_add_u32 v{VWF}, s{S_DW}, v{VWF}", f"v_add_u32 v{VWG}, s{S_DW}, v{VWG}"]
step(0, rdA, rdB, pre=WADV)
step(1, rdB, rdA, pre=WADV + [f"v_add_u32 v{VXB}, s{S_DX}, v{VXB}", f"s_sub_u32 s{S_DX}, 0, s{S_DX}", f"s_add_u32 s{S_IT}, s{S_IT}, 1"])
e(f"s_cmp_lt_u32 s{S_IT}, 3")
e("s_cbranch_scc1 L_loop")

def store_ops(f, Q):
    l = []
    l.append(("s_nop 1", 8, ''))
    l.append((f"v_permlane16_swap_b32 v{Q}, v{Q+2}", 4, ''))
    l.append((f"v_permlane16_swap_b32 v{Q+1}, v{Q+3}", 4, ''))
    vo = [VO0, VO0, VO0, VO2][f >> 1]
    o = (f & ~1) * 1024
    if o < 4096: l.append((f"buffer_store_dwordx4 v[{Q}:{Q+3}], v{vo}, s[{SO}:{SO+3}], 0 offen offset:{o} {A.store}", 4, ''))
    else: l.append((f"buffer_store_dwordx4 v[{Q}:{Q+3}], v{vo}, s[{SO}:{SO+3}], s{S_IT} offen offset:{o-4096} {A.store}", 4, ''))
    return l
def epi10(f, pk=False):
    F = areg(f, 0); G = areg(f, 1)
    P = areg(f & ~1, 0) + 2*(f & 1)
    l = []
    if not pk:
        for r in range(4): l.append((f"v_mul_f32 v{TT+r}, s{S_C1}, v{F+r}", 4, 'F'))
        for r in range(4): l.append((f"v_mul_f32 v{G+r}, s{S_C2}, v{G+r}", 4, 'G'))
    else:
        for r in (0, 2): l.append((f"v_pk_mul_f32 v[{TT+r}:{TT+r+1}], v[{F+r}:{F+r+1}], s[{S_P1}:{S_P1+1}]", 4, 'F'))
        for r in (0, 2): l.append((f"v_pk_mul_f32 v[{G+r}:{G+r+1}], v[{G+r}:{G+r+1}], s[{S_P2}:{S_P2+1}]", 4, 'G'))
    for r in range(4): l.append((f"v_exp_f32 v{TT+r}, -abs(v{TT+r})", 8, ''))
    for r in range(4): l.append((f"v_exp_f32 v{G+r}, v{G+r}", 8, ''))
    if not pk:
        for r in range(4): l.append((f"v_add_f32 v{TU+r}, 1.0, v{TT+r}", 4, ''))
        for r in range(4): l.append((f"v_fma_f32 v{TU+r}, v{TU+r}, v{G+r}, v{TU+r}", 4, ''))
        for r in range(4): l.append((f"v_sub_f32 v{G+r}, 1.0, v{TT+r}", 4, ''))
    else:
        for r in (0, 2): l.append((f"v_pk_add_f32 v[{TU+r}:{TU+r+1}], v[{TT+r}:{TT+r+1}], s[{S_ONE}:{S_ONE+1}]", 4, ''))
        for r in (0, 2): l.append((f"v_pk_fma_f32 v[{TU+r}:{TU+r+1}], v[{TU+r}:{TU+r+1}], v[{G+r}:{G+r+1}], v[{TU+r}:{TU+r+1}]", 4, ''))
        for r in (0, 2): l.append((f"v_pk_add_f32 v[{G+r}:{G+r+1}], v[{TT+r}:{TT+r+1}], s[{S_ONE}:{S_ONE+1}] neg_lo:[1,0] neg_hi:[1,0]", 4, ''))
    for r in range(4): l.append((f"v_rcp_f32 v{TU+r}, v{TU+r}", 8, ''))
    for r in range(4): l.append((f"v_bfi_b32 v{G+r}, s{S_MASK}, v{G+r}, v{F+r}", 4, ''))
    if not pk:
        for r in range(4): l.append((f"v_mul_f32 v{G+r}, v{G+r}, v{TU+r}", 4, ''))
    else:
        for r in (0, 2): l.append((f"v_pk_mul_f32 v[{G+r}:{G+r+1}], v[{G+r}:{G+r+1}], v[{TU+r}:{TU+r+1}]", 4, ''))
    l.append((f"v_cvt_pk_bf16_f32 v{P}, v{G}, v{G+1}", 4, ''))
    l.append((f"v_cvt_pk_bf16_f32 v{P+1}, v{G+2}, v{G+3}", 4, ''))
    if f & 1: l += store_ops(f, areg(f & ~1, 0))
    return [(t, c_, k, f) for (t, c_, k) in l]
def epi9(f):
    F = areg(f, 0); G = areg(f, 1)
    T = TT + 4*(f & 1)
    P = areg(f & ~1, 0) + 2*(f & 1)
    if A.xst: P = F
    def grp(fmt, cost, k, pkfmt=None):
        return ('grp', [fmt(r) for r in range(4)], cost, k, [pkfmt(r) for r in (0, 2)] if pkfmt else None)
    def pr(b, r): return f"v[{b+r}:{b+r+1}]"
    gs = [
        grp(lambda r: f"v_mul_f32 v{T+r}, s{S_C1}, v{F+r}", 4, 'F', lambda r: f"v_pk_mul_f32 {pr(T,r)}, {pr(F,r)}, s[{S_P1}:{S_P1+1}]"),
        grp(lambda r: f"v_bfi_b32 v{F+r}, s{S_MASK}, 0.5, v{F+r}", 4, 'F'),
        grp(lambda r: f"v_exp_f32 v{T+r}, -abs(v{T+r})", 8, ''),
        grp(lambda r: f"v_fma_f32 v{F+r}, v{T+r}, v{F+r}, v{F+r}", 4, '', lambda r: f"v_pk_fma_f32 {pr(F,r)}, {pr(T,r)}, {pr(F,r)}, {pr(F,r)}"),
        grp(lambda r: f"v_mul_f32 v{G+r}, s{S_C2}, v{G+r}", 4, 'G', lambda r: f"v_pk_mul_f32 {pr(G,r)}, {pr(G,r)}, s[{S_P2}:{S_P2+1}]"),
        grp(lambda r: f"v_exp_f32 v{G+r}, v{G+r}", 8, ''),
        grp(lambda r: f"v_fma_f32 v{G+r}, v{F+r}, v{G+r}, v{F+r}", 4, '', lambda r: f"v_pk_fma_f32 {pr(G,r)}, {pr(F,r)}, {pr(G,r)}, {pr(F,r)}"),
        grp(lambda r: f"v_rcp_f32 v{G+r}, v{G+r}", 8, ''),
        grp(lambda r: f"v_fma_f32 v{G+r}, -abs(v{F+r}), v{G+r}, v{G+r}", 4, ''),
    ]
    l = []
    for gi, (_, txts, cost, k, pks) in enumerate(gs):
        for r, t in enumerate(txts):
            l.append((t, cost, k, f, (pks[r // 2] if pks and r % 2 == 0 else None)))
    l.append((f"v_cvt_pk_bf16_f32 v{P}, v{G}, v{G+1}", 4, '', f, None))
    l.append((f"v_cvt_pk_bf16_f32 v{P+1}, v{G+2}, v{G+3}", 4, '', f, None))
    if A.xst: l.append((f"ds_write_b64 v{VO0}, v[{P}:{P+1}] offset:{f*256}", 4, '', f, None))
    elif f & 1: l += [(t, c_, k, f, None) for (t, c_, k) in store_ops(f, areg(f & ~1, 0))]
    return l

VK = 254
def epi8(f):
    F = areg(f, 0); G = areg(f, 1); P = F
    def pr(b, r): return f"v[{b+r}:{b+r+1}]"
    gs = [
        ([f"v_fma_f32 v{F+r}, s{S_C1}, v{F+r}, v{VK}" for r in range(4)], 4, 'F', [f"v_pk_fma_f32 {pr(F,r)}, {pr(F,r)}, s[{S_P1}:{S_P1+1}], v[{VK}:{VK+1}] op_sel_hi:[1,1,0]" for r in (0, 2)]),
        ([f"v_exp_f32 v{F+r}, v{F+r} clamp" for r in range(4)], 8, '', None),
        ([f"v_fma_f32 v{F+r}, v{F+r}, s{S_MASK}, 0.5" for r in range(4)], 4, '', [f"v_pk_fma_f32 {pr(F,r)}, {pr(F,r)}, s[{S_ONE}:{S_ONE+1}], 0.5 op_sel_hi:[1,1,0]" for r in (0, 2)]),
        ([f"v_mul_f32 v{G+r}, s{S_C2}, v{G+r}" for r in range(4)], 4, 'G', [f"v_pk_mul_f32 {pr(G,r)}, {pr(G,r)}, s[{S_P2}:{S_P2+1}]" for r in (0, 2)]),
        ([f"v_exp_f32 v{G+r}, v{G+r}" for r in range(4)], 8, '', None),
        ([f"v_fma_f32 v{G+r}, v{F+r}, v{G+r}, v{F+r}" for r in range(4)], 4, '', [f"v_pk_fma_f32 {pr(G,r)}, {pr(F,r)}, {pr(G,r)}, {pr(F,r)}" for r in (0, 2)]),
        ([f"v_rcp_f32 v{G+r}, v{G+r}" for r in range(4)], 8, '', None),
        ([f"v_fma_f32 v{G+r}, -v{F+r}, v{G+r}, v{G+r}" for r in range(4)], 4, '', [f"v_pk_fma_f32 {pr(G,r)}, {pr(F,r)}, {pr(G,r)}, {pr(G,r)} neg_lo:[1,0,0] neg_hi:[1,0,0]" for r in (0, 2)]),
    ]
    l = []
    for (txts, cost, k, pks) in gs:
        for r, t in enumerate(txts):
            l.append((t, cost, k, f, (pks[r // 2] if pks and r % 2 == 0 else None)))
    l.append((f"v_cvt_pk_bf16_f32 v{P}, v{G}, v{G+1}", 4, '', f, None))
    l.append((f"v_cvt_pk_bf16_f32 v{P+1}, v{G+2}, v{G+3}", 4, '', f, None))
    l.append((f"ds_write_b64 v{VO0}, v[{P}:{P+1}] offset:{f*256}", 4, '', f, None))
    return l
if A.epi == 8:
    epi9 = epi8; A.epi = 9

L = A.lag
gl = [(f, 0) for f in range(L+1)]
for f in range(8):
    gl.append((f, 1))
    if f + L + 1 < 8: gl.append((f + L + 1, 0))
seqT = order('a' if A.tord == 'a' else 'A')
rd7 = reads_for(1, 1, 1, seqT)
last7 = {}
for i, (key, _) in enumerate(rd7): last7[key] = i
lab("L_tail")
stamp_issue()
e("s_waitcnt lgkmcnt(0)")
e(f"v_add_u32 v{VWF}, s{S_WP}, v{VWF}"); e(f"v_add_u32 v{VWG}, s{S_WP}, v{VWG}")
e("s_barrier")
stamp_commit()
if not A.xst: e(f"s_movk_i32 s{S_IT}, 4096")
ms = []
for (f, s) in gl:
    if A.tord == 'a':
        for c in range(2):
            for t in range(5): ms.append((s, f, c, t))
    else:
        for t in range(5):
            for c in range(2): ms.append((s, f, c, t))
issued = 0; done = -1
pend = []
wrote = {}
fin = set()
nxt = 0
syncs = []
wpos = []
def states_since(pos):
    n = 0
    for l in out[pos+1:]:
        m = re.match(r"\s*s_nop (\d+)", l)
        n += (int(m.group(1)) + 1) if m else 1
    return n
def emit_epi(op, txt=None):
    k, f = op[2], op[3]
    if k:
        d = states_since(wrote[(f, 0 if k == 'F' else 1)])
        if d < 8: e(f"s_nop {8-d-1}")
    tx = txt or op[0]
    if 's' in A.dbg and ('buffer_store' in tx or 'permlane' in tx): return
    if 'p' in A.dbg and ('permlane' in tx): return
    if 't' in A.dbg and ('v_exp' in tx or 'v_rcp' in tx): tx = "v_mov_b32 v254, v255"
    if 'n' in A.dbg and not ('v_exp' in tx or 'v_rcp' in tx): tx = "v_mov_b32 v254, v255"
    if 'm' in A.dbg: tx = "v_mov_b32 v254, v255"
    e(tx)
def ready(op):
    k, f = op[2], op[3]
    if not k: return True
    c = 0 if k == 'F' else 1
    return (f, c) in fin and states_since(wrote[(f, c)]) >= 8
def need_of(f, c, t): return max(last7[('w', t, c)], last7[('x', f+t)])
for g, (s, f, c, t) in enumerate(ms):
    if s == 1:
        need = need_of(f, c, t)
        assert need < issued, (g, need, issued)
        if need > done:
            la = need
            for (s2, f2, c2, t2) in ms[g+1:g+3]:
                if s2 == 1 and need_of(f2, c2, t2) < issued: la = max(la, need_of(f2, c2, t2))
            n = issued - 1 - la
            if A.wfix: n += sum(1 for w in wpos if w > la)
            if n > 15: n = 15; la = max(la, issued - 1 - 15)
            e(f"s_waitcnt lgkmcnt({n})"); done = la if A.wfix else issued - 1 - n
    e(mf(s, f, c, t))
    wrote[(f, c)] = len(out) - 1
    if s == 1 and t == 4: fin.add((f, c))
    k = 0
    while issued < 32 and k < (2 if issued < 25 else 1):
        e(rd7[issued][1]); issued += 1; k += 1
    quota = A.quota
    if syncs and g - syncs[0] >= A.sd:
        syncs.pop(0); e("s_waitcnt lgkmcnt(0)"); e("s_barrier"); quota = A.bq
        if A.wfix: done = issued - 1
    while quota > 0:
        if not pend:
            if nxt < 8 and (nxt, 0) in fin and (A.epi == 9 or (nxt, 1) in fin):
                pend = epi9(nxt) if A.epi == 9 else epi10(nxt); nxt += 1
            else: break
        if pend[0][1] > quota or not ready(pend[0]): break
        op = pend.pop(0); emit_epi(op); quota -= op[1]
        if op[0].startswith("ds_write"):
            wpos.append(issued - 0.5)
            if A.wfree: quota += 4
        if op[0].startswith("ds_write") and str(op[3]) in A.bat: syncs.append(g)
stamp_issue()
if A.epi == 9:
    rest = list(pend)
    for ff in range(nxt, 8): rest += epi9(ff)
    i = 0
    syncs = [0 for _ in syncs]
    while i < len(rest):
        op = rest[i]
        if syncs and i - syncs[0] >= A.se:
            syncs.pop(0); e("s_waitcnt lgkmcnt(0)"); e("s_barrier")
        if A.pk and op[4]:
            emit_epi(op, op[4]); i += 2
        else:
            emit_epi(op); i += 1
        if op[0].startswith("ds_write") and str(op[3]) in A.bat: syncs.append(i)
    for _ in syncs:
        e("s_waitcnt lgkmcnt(0)"); e("s_barrier")
else:
    for op in pend: emit_epi(op)
    for ff in range(nxt, 8):
        for op in epi10(ff, A.pk): emit_epi(op)
if DIAG:
    e("s_waitcnt lgkmcnt(0)"); stamp_commit(10)
    stamp_now(11)
    e("s_waitcnt vmcnt(0)")
    lab("L_diag")
    e("s_load_dwordx2 s[58:59], s[0:1], 32")
    e("s_waitcnt vmcnt(0) lgkmcnt(0)")
    stamp_now(12)
    e("s_barrier")
    e(f"v_mbcnt_lo_u32_b32 v0, -1, 0")
    e(f"v_mbcnt_hi_u32_b32 v0, -1, v0")
    e("s_mov_b32 s52, s58"); e("s_mov_b32 s53, s59"); e("s_mov_b32 s54, 0x100000"); e("s_mov_b32 s55, 0x20000")
    e("v_mov_b32 v1, 0")
    vals = [f"s{SC0+i}" for i in range(NST)] + [f"s{SR0+i}" for i in range(NST)]
    for i, s in enumerate(vals):
        e(f"v_mov_b32 v2, {s}")
        e(f"v_cmp_eq_u32 vcc, {i}, v0")
        e("s_nop 1")
        e("v_cndmask_b32 v1, v1, v2, vcc")
    e("s_lshl_b32 s56, s%d, 3" % (48 if A.ntx else 2))
    e("s_lshr_b32 s49, s3, 6")
    e("s_add_u32 s56, s56, s49")
    e("s_lshl_b32 s56, s56, 7")
    e("v_lshlrev_b32 v3, 2, v0")
    e("v_cmp_gt_u32 vcc, 32, v0")
    e("s_and_saveexec_b64 s[4:5], vcc")
    e("buffer_store_dword v1, v3, s[52:55], s56 offen")
    e("s_waitcnt vmcnt(0)")
if A.dly:
    mk, n = map(int, A.dly.split(','))
    e("s_and_b32 s4, s2, 7"); e("s_lshl_b32 s4, 1, s4"); e(f"s_and_b32 s4, s4, {mk}"); e("s_cbranch_scc0 L_end")
    e(f"s_mov_b32 s4, {n}"); lab("L_dly"); e("s_sub_u32 s4, s4, 1"); e("s_cbranch_scc0 L_dly")
lab("L_end")
e("s_endpgm")
if DIAG: ldiag()
lab("L_cend")
if A.pad: out.append(f".fill {A.pad//4}, 4, 0xbf810000")

footer = f"""
.section .rodata,"a"
.p2align 6
.amdhsa_kernel {NAME}_kernel
  .amdhsa_next_free_vgpr 256
  .amdhsa_next_free_sgpr 96
  .amdhsa_accum_offset 256
  .amdhsa_group_segment_fixed_size 0
  .amdhsa_kernarg_size 40
  .amdhsa_user_sgpr_count 2
  .amdhsa_user_sgpr_kernarg_segment_ptr 1
  .amdhsa_system_sgpr_workgroup_id_x 1
.end_amdhsa_kernel
"""

def labels(text):
    import subprocess, tempfile, os
    d = tempfile.mkdtemp()
    open(d + "/a.s", "w").write(text)
    subprocess.check_call(["clang", "-x", "assembler", "-target", "amdgcn-amd-amdhsa", "-mcpu=gfx950", "-c", d + "/a.s", "-o", d + "/a.o"])
    o = subprocess.check_output(["llvm-objdump", "-t", d + "/a.o"], text=True)
    r = {}
    for l in o.splitlines():
        p = l.split()
        if len(p) >= 5 and p[-1].startswith("L_"): r[p[-1]] = int(p[0], 16)
    return r
text = header + "\n".join(out) + "\n" + footer
lb = labels(text)
sys.stderr.write("ldend %d consumer %d loop %d end %d\n" % (lb["L_ldend"], lb["L_consumer"], lb["L_loop"], lb["L_cend"]))
if A.cw:
    need = lb["L_pc"] + 255 * A.cw + 64 - lb["L_cend"]
    if need > 0: text = text.replace("L_cend:\n", "L_cend:\n.fill %d, 4, 0xbf810000\n" % ((need + 3) // 4))
    else: sys.stderr.write("WARNING: warm range ends %d bytes before the code end\n" % (-need))
sys.stdout.write(text)
```

```python
import sys, argparse, re

ap = argparse.ArgumentParser()
ap.add_argument("--diag", action="store_true")
ap.add_argument("--loader", default="w x w b10 x b5 w b0 r w x b5 w b0 w x b5 r w b0 w b0")
ap.add_argument("--store", default="nt", help="store cache flags")
ap.add_argument("--order", default="a", help="main-step MFMA order")
ap.add_argument("--bar", type=int, default=40, help="MFMA index of the mid-step barrier")
ap.add_argument("--rdend", type=int, default=74, help="last MFMA gap carrying a read")
ap.add_argument("--lag", type=int, default=1)
ap.add_argument("--xflag", default="nt", help="cache flags on X DMA")
ap.add_argument("--wflag", default="", help="cache flags on W DMA")
ap.add_argument("--pk", type=int, default=1)
ap.add_argument("--quota", type=int, default=8)
ap.add_argument("--pad", type=int, default=0)
ap.add_argument("--cw", type=int, default=0, help="code warm stride (bytes per lane, 0=off)")
ap.add_argument("--epi", type=int, default=9)
ap.add_argument("--tord", default="a", help="tail group order: a (chain) | t")
ap.add_argument("--dbg", default="", help="diagnostic tail edits: s=no store/permlane in gaps, t=trans->mov, w=waits right after MFMA")
ap.add_argument("--pfw", default="", help="p0:n vector L2 prefetch of W phases")
ap.add_argument("--pfx", default="", help="c0:n vector L2 prefetch of X blocks")
ap.add_argument("--pfpos", default="first", help="first | op P in loader")
ap.add_argument("--rot", type=int, default=1)
ap.add_argument("--ntx", type=int, default=0, help="xor wg id with this (diagnostic remap)")
ap.add_argument("--cpf", default="", help="p0:n[:c0[:nx]] cooperative prefetch: waves<n fetch W phase p0+w, wave 3 fetches X chunks c0..")
ap.add_argument("--ts", type=int, default=0, help="tap-stream W routine (ops wN = N taps)")
ap.add_argument("--pf1", type=int, default=0, help="prefetch own tap of W1 first")
ap.add_argument("--wrot", type=int, default=0, help="tap rotation by m-tile")
ap.add_argument("--dly", default="", help="DIAGNOSTIC mask,n : end delay loop for xcds in mask")
ap.add_argument("--rotl", default="", help="8 digits: rotation per wg&7")
ap.add_argument("--cpx", type=int, default=0, help="consumer scalar prefetch of X1: n loads per wave")
ap.add_argument("--cpw", default="", help="consumer scalar prefetch of W: phase:n loads per wave")
ap.add_argument("--cprog", default="", help="consumer scalar prefetch program: wN xN k B")
ap.add_argument("--wfix", type=int, default=0)
ap.add_argument("--wfree", type=int, default=0)
ap.add_argument("--p0", default="w00,x0,w01,x1,x2,w10,w11,x3,x4,w20,w21,x5,x6,w30,w31,x7,w40,w41,x8,x9,x10,x11")
ap.add_argument("--p0n", type=int, default=6, help="reads issued before the first MFMA")
ap.add_argument("--p0r", type=int, default=2, help="reads per gap in phase 0")
ap.add_argument("--p0bar", type=int, default=40)
ap.add_argument("--tseq", default="05 15 25 35 06 16 07 17 267 367 4* 5* 6* 7*")
ap.add_argument("--keep", type=int, default=10)
ap.add_argument("--b6", type=int, default=10)
ap.add_argument("--b7", type=int, default=44)
ap.add_argument("--trd", type=int, default=2)
ap.add_argument("--ahead", type=int, default=30)
ap.add_argument("--lead", type=int, default=6)
ap.add_argument("--tst", type=int, default=0)
ap.add_argument("--tst0", type=int, default=0)
ap.add_argument("--koff", type=int, default=-1, help="kernel offset inside its 4K page (multiple of 256)")
ap.add_argument("--cwarm", type=int, default=0)
ap.add_argument("--lal", type=int, default=6, help="loop alignment: 6 inline p2align, 0 none, -6 pad before the consumer")
ap.add_argument("--pads", type=int, default=0)
ap.add_argument("--padoff", type=int, default=0)
ap.add_argument("--lend", type=int, default=0, help="late loader code after the consumer code")
ap.add_argument("--nz", type=int, default=0, help="no accumulator zero-init")
ap.add_argument("--pre", type=int, default=0)
ap.add_argument("--xst", type=int, default=0, help="stores through LDS by the loader waves")
ap.add_argument("--sd", type=int, default=5, help="MFMAs between ds_write and its barrier")
ap.add_argument("--se", type=int, default=20, help="exposed part: ops between ds_write and its barrier")
ap.add_argument("--store2", default="nt")
ap.add_argument("--nb", type=int, default=4, help="loop count of the O loop")
ap.add_argument("--bat", default="1357", help="groups after which a batch barrier is placed")
ap.add_argument("--bq", type=int, default=0)
ap.add_argument("--tau0", type=int, default=0)
ap.add_argument("--pb", type=int, default=0, help="DIAG: extra stamped barriers before B0")
ap.add_argument("--xrot", type=int, default=0, help="X instr rotation by n-tile")
A = ap.parse_args()
A.epi = 8
if A.cprog: A.cpw = '1:10'
DIAG = A.diag

NAME = "standalone__autoregressive_conv_wavernn__speech"
XBLK = 1040
XSLOT = 20480
WBASE = 2 * XSLOT
WSLOT = 40960
LDS_BYTES = WBASE + 3 * WSLOT

ALIGN = "" if A.koff < 0 else ".p2align 12\n.fill %d, 4, 0xbf810000\n" % (((A.koff - 0x300) % 4096) // 4)
KOFF = 0xe00 if A.koff < 0 else A.koff
out = []
def e(s): out.append("    " + s)
def lab(s): out.append(s + ":")

header = f"""; x (2,4000,256) bf16 @0, w (5,256,512) bf16 @8, out (2,4000,256) bf16 @16, debug @24, ws @32
; @launch grid=(256,1,1) block=(512,1,1) lds={LDS_BYTES}
.amdgcn_target "amdgcn-amd-amdhsa--gfx950"
.text
{ALIGN}.globl {NAME}_kernel
.p2align 8
.type {NAME}_kernel,@function
{NAME}_kernel:
"""
SX, SW, SO = 12, 16, 20
NST = 16
SC0, SR0 = 60, 76
def stamp_issue():
    if DIAG and not A.tst:
        e("s_memtime s[50:51]"); e("s_memrealtime s[52:53]")
def stamp_commit(idx=None):
    if DIAG and (not A.tst or idx == 12):
        if idx is None:
            e(f"s_movreld_b32 s{SC0}, s50"); e(f"s_movreld_b32 s{SR0}, s52"); e("s_add_u32 m0, m0, 1")
        else:
            e(f"s_mov_b32 s{SC0+idx}, s50"); e(f"s_mov_b32 s{SR0+idx}, s52")
def stamp_now(idx):
    if DIAG and A.tst:
        if idx == 12: e("s_memtime s[50:51]"); e("s_memrealtime s[52:53]"); e("s_waitcnt lgkmcnt(0)"); stamp_commit(idx)
    elif DIAG:
        stamp_issue(); e("s_waitcnt lgkmcnt(0)"); stamp_commit(idx)

if DIAG:
    e("s_memtime s[54:55]"); e("s_memrealtime s[56:57]")
e(f"s_load_dwordx2 s[{SW}:{SW+1}], s[0:1], 8")
e(f"s_load_dwordx2 s[{SX}:{SX+1}], s[0:1], 0")
e("v_readfirstlane_b32 s3, v0")
e("s_lshr_b32 s28, s2, 8")
e("s_cbranch_scc1 L_end0")
if A.ntx: e("s_mov_b32 s48, s2"); e(f"s_xor_b32 s2, s2, {A.ntx}")
e("s_bitcmp1_b32 s3, 8")
e("s_cbranch_scc1 L_consumer")

sR, sT, sRX, sRW, sB, sMX, sS, sMW, sK, sO, sC = 20, 21, 22, 23, 24, 25, 26, 27, 28, 29, 30
sTau, sWS, sT1 = 31, 36, 37
RET, PC = 32, 34
VX, VW, VXT, VW2 = 3, 5, 7, 10
e("v_lshrrev_b32 v2, 3, v0")
e("v_lshrrev_b32 v4, 4, v0")
e(f"s_and_b32 s{sR}, s2, 3")
e(f"s_lshr_b32 s{sT}, s2, 5")
e("v_bfi_b32 v4, 6, v2, v4")
if A.wrot:
    e(f"s_mul_i32 s{sTau}, s{sT}, {0 if A.tau0 else 5}")
e(f"s_lshl3_add_u32 s{sT}, s{sR}, s{sT}")
e("v_xor_b32 v4, v4, v0")
e(f"s_mul_i32 s{sT}, s{sT}, 64000")
e("v_bfi_b32 v4, 14, v4, v0")
e(f"s_addk_i32 s{sT}, 0xf000")
e("v_and_b32 v6, 7, v4")
if A.rotl:
    lit = sum(int(ch) << (4*i) for i, ch in enumerate(A.rotl))
    e(f"s_lshl_b32 s{sR}, s2, 2"); e(f"s_lshr_b32 s{sR}, 0x{lit:x}, s{sR}"); e(f"s_and_b32 s{sR}, s{sR}, 3")
elif A.rot == 1: pass
elif A.rot == 3: e(f"s_min_u32 s{sR}, s{sR}, 2")
elif A.rot == 4: e(f"s_and_b32 s{sR}, s2, 1")
elif A.rot == 5: e(f"s_and_b32 s{sR}, s2, 2")
elif A.rot == 6: e(f"s_lshr_b32 s{sR}, s{sR}, 1")
elif A.rot == 7: e(f"s_andn2_b32 s{sR}, 1, s2")
elif A.rot == 0: e(f"s_mov_b32 s{sR}, 0")
e(f"s_lshl_b32 s{sRX}, s{sR}, 7")
e(f"s_lshl_b32 s{sRW}, s{sR}, 16")
e("v_lshrrev_b32 v7, 3, v4")
e(f"s_and_b32 s{sB}, s2, 24")
e(f"s_lshl4_add_u32 s{sRW}, s{sB}, s{sRW}")
CPF = list(map(int, A.cpf.split(':'))) if A.cpf else None
sP, sPX = 38, 39
if CPF and len(CPF) > 2:
    e(f"s_lshl_b32 s{sPX}, s{sB}, 11")
    e(f"s_add_u32 s{sPX}, s{sPX}, s{sT}")
e("v_lshlrev_b32 v7, 9, v7")
e(f"s_mov_b32 s{SX+2}, 2048000")
e("s_bitcmp1_b32 s2, 2")
e(f"s_cselect_b32 s{sB}, s{SX+2}, 0")
e(f"v_lshl_add_u32 v{VW}, v6, 4, v7")
e(f"s_lshl_b32 s{SX+3}, 1, 17")
e(f"s_lshl_b32 s{SW+3}, 1, 17")
e(f"s_lshl_b32 s{SW+2}, 5, 18")
e("v_and_b32 v1, 7, v0")
e(f"s_movk_i32 s{sK}, 16384")
e(f"s_lshl_b32 s{sWS}, 5, 13")
if CPF:
    e(f"s_lshr_b32 s{sP}, s2, 3")
    e("v_lshlrev_b32 v8, 7, v1")
    e(f"s_lshl1_add_u32 s{sP}, s{sP}, s3")
    e("v_and_b32 v9, 7, v2")
    e(f"s_add_u32 s{sP}, s{sP}, s{sRX}")
    if CPF[0]: e(f"s_add_u32 s{sP}, s{sP}, {64*CPF[0]}")
    e("v_lshl_add_u32 v8, v9, 18, v8")
    e(f"s_lshl_b32 s{sP}, s{sP}, 9")
    if A.rot == 1: e(f"s_bitset0_b32 s{sP}, 18")
    if len(CPF) > 2:
        e("v_and_b32 v9, 31, v0")
        e(f"v_lshl_add_u32 v9, v9, 9, s{sPX}")
        e("v_and_b32 v11, 32, v0")
        e("v_lshl_add_u32 v9, v11, 2, v9")
PN = [o for o in A.loader.split() if o[0] == 'P']
if PN:
    e(f"s_lshr_b32 s{sP}, s2, 3")
    e("v_lshlrev_b32 v8, 7, v1")
    e(f"s_lshl1_add_u32 s{sP}, s{sP}, s{sRX}")
    e("v_lshl_add_u32 v8, v2, 18, v8")
    if PN[0] == 'P': e(f"s_add_u32 s{sP}, s{sP}, 64")
    e(f"s_lshl_b32 s{sP}, s{sP}, 9")
if any(o[0] == 'Q' for o in A.loader.split()):
    e("s_and_b32 s42, s2, 24"); e("s_lshl_b32 s42, s42, 5"); e("s_add_u32 s42, s42, s3"); e("s_mulk_i32 s42, 72"); e(f"s_add_u32 s42, s42, s{sT}")
    e("v_and_b32 v9, 63, v0"); e("v_lshl_add_u32 v9, v9, 9, s42")
e(f"v_lshl_add_u32 v1, v1, 4, s{sT}")
e(f"s_lshr_b32 s{sMX}, s3, 6")
if A.wrot:
    e(f"s_and_b32 s{sTau}, s{sTau}, -8")
    e(f"s_add_u32 s{sMW}, s{sMX}, s{sTau}")
    e(f"s_lshl_b32 s{sMW}, s{sMW}, 10")
    e(f"s_add_u32 s{sMW}, s{sMW}, s{sWS}")
    e(f"s_lshl_b32 s{sTau}, s{sTau}, 15")
else:
    e(f"s_lshl4_add_u32 s{sMW}, s3, s{sWS}")
e(f"s_mulk_i32 s{sMX}, {XBLK}")
e(f"v_lshl_add_u32 v{VX}, v2, 9, v1")
e(f"v_add_u32 v{VW2}, s{sK}, v{VW}")
ops = A.loader.split()
def emit_x():
    lab("L_x")
    if not A.xrot:
        e(f"s_mov_b32 m0, s{sMX}")
        e(f"v_mov_b32 v{VXT}, v{VX}")
        e(f"s_mov_b32 s{sC}, 3")
        lab("L_xl")
        e(f"buffer_load_dwordx4 v{VXT}, s[{SX}:{SX+3}], s{sRX} offen {A.xflag} lds")
        e(f"s_addk_i32 m0, {4*XBLK}")
        e(f"v_add_u32 v{VXT}, s{sK}, v{VXT}")
        e(f"s_sub_u32 s{sC}, s{sC}, 1")
        e("s_cbranch_scc0 L_xl")
    else:
        e(f"s_mov_b32 s{sC}, s{sNT}")
        lab("L_xl")
        e(f"s_mul_i32 s{sT1}, s{sC}, {4*XBLK}")
        e(f"v_lshl_add_u32 v{VXT}, s{sC}, 14, v{VX}")
        e(f"s_add_u32 m0, s{sT1}, s{sMX}")
        e(f"s_add_u32 s{sC}, s{sC}, 1")
        e(f"buffer_load_dwordx4 v{VXT}, s[{SX}:{SX+3}], s{sRX} offen {A.xflag} lds")
        e(f"s_and_b32 s{sC}, s{sC}, 3")
        e(f"s_cmp_lg_u32 s{sC}, s{sNT}")
        e("s_cbranch_scc1 L_xl")
        e(f"s_add_u32 m0, s{sMX}, {16*XBLK}")
        e(f"v_lshl_add_u32 v{VXT}, s{sK}, 2, v{VX}")
    e("s_bfm_b64 exec, 40, 0")
    e(f"buffer_load_dwordx4 v{VXT}, s[{SX}:{SX+3}], s{sRX} offen {A.xflag} lds")
    e("s_mov_b64 exec, -1")
    e(f"s_xor_b32 s{sMX}, s{sMX}, {XSLOT}")
    e(f"s_addk_i32 s{sRX}, 128")
    e(f"s_bitset0_b32 s{sRX}, 9")
    e(f"s_setpc_b64 s[{RET}:{RET+1}]")
def emit_w_ts(first):
    lab("L_w")
    e(f"s_mov_b32 m0, s{sMW}")
    if first: e("s_waitcnt lgkmcnt(0)")
    lab("L_wl")
    e(f"buffer_load_dwordx4 v{VW}, s[{SW}:{SW+3}], s{sO} offen {A.wflag} lds")
    e("s_addk_i32 m0, 4096")
    e(f"s_lshl4_add_u32 s{sT1}, s{sK}, s{sO}")
    e(f"buffer_load_dwordx4 v{VW2}, s[{SW}:{SW+3}], s{sO} offen {A.wflag} lds")
    e("s_addk_i32 m0, 4096")
    e(f"s_sub_u32 s{sO}, s{sT1}, s{SW+2}")
    e(f"s_cselect_b32 s{sO}, s{sT1}, s{sO}")
    e(f"s_cselect_b32 s{sT1}, 0, s{sWS}")
    e(f"s_sub_u32 m0, m0, s{sT1}")
    e(f"s_cmp_lg_u32 s{sO}, s{sS}")
    e("s_cbranch_scc1 L_wn")
    e(f"s_add_u32 m0, m0, s{sWS}")
    e(f"s_lshl1_add_u32 s{sRW}, s{sK}, s{sRW}")
    e(f"s_bitset0_b32 s{sRW}, 18")
    e(f"s_add_u32 s{sS}, s{sRW}, s{sTau}")
    e(f"s_mov_b32 s{sO}, s{sS}")
    lab("L_wn")
    e(f"s_sub_u32 s{sC}, s{sC}, 1")
    e("s_cbranch_scc0 L_wl")
    e(f"s_mov_b32 s{sMW}, m0")
    e(f"s_setpc_b64 s[{RET}:{RET+1}]")
sNT = 40
sSX = 41
if A.xrot: e(f"s_bfe_u32 s{sNT}, s2, 0x20003")
if A.ts:
    assert A.wrot
    e(f"s_add_u32 s{sS}, s{sRW}, s{sTau}")
    e(f"s_mov_b32 s{sO}, s{sS}")
    e(f"s_getpc_b64 s[{RET}:{RET+1}]")
    lab("L_pc2")
    e(f"s_add_u32 s{RET}, s{RET}, L_sched-L_pc2")
    e(f"s_addc_u32 s{RET+1}, s{RET+1}, 0")
    if ops[0][0] == 'w':
        e(f"s_mov_b32 s{sC}, {int(ops[0][1:] or 5)-1}")
        emit_w_ts(True); emit_x()
    else:
        e("s_waitcnt lgkmcnt(0)")
        e(f"s_add_u32 s{SX}, s{SX}, s{sB}")
        e(f"s_addc_u32 s{SX+1}, s{SX+1}, 0")
        emit_x(); emit_w_ts(False)
else:
    assert ops[0] == 'x'
    e(f"s_getpc_b64 s[{RET}:{RET+1}]")
    lab("L_pc2")
    e(f"s_add_u32 s{RET}, s{RET}, L_sched-L_pc2")
    e(f"s_addc_u32 s{RET+1}, s{RET+1}, 0")
    if A.pf1:
        if A.wrot: e(f"s_add_u32 s{sO}, s{sRW}, s{sTau}")
        e(f"s_lshl1_add_u32 s{sO}, s{sK}, s{sO if A.wrot else sRW}")
    e("s_waitcnt lgkmcnt(0)")
    if A.pf1:
        e(f"buffer_load_dword v8, v{VW}, s[{SW}:{SW+3}], s{sO} offen")
        e(f"buffer_load_dword v9, v{VW2}, s[{SW}:{SW+3}], s{sO} offen")
    e(f"s_add_u32 s{SX}, s{SX}, s{sB}")
    e(f"s_addc_u32 s{SX+1}, s{SX+1}, 0")
    if CPF:
        n = CPF[1]
        if n < 4:
            e(f"s_cmpk_ge_u32 s3, {64*n}")
            e("s_cbranch_scc1 L_pfx")
        e(f"buffer_load_dword v12, v8, s[{SW}:{SW+3}], s{sP} offen")
        if len(CPF) > 2:
            e("s_branch L_x")
            lab("L_pfx")
            if n < 3:
                e(f"s_cmpk_lt_u32 s3, 192")
                e("s_cbranch_scc1 L_x")
            if len(CPF) > 3 and CPF[3] == 1: e("s_bfm_b64 exec, 32, 0")
            e(f"buffer_load_dword v12, v9, s[{SX}:{SX+3}], s{sRX} offen offset:{128*CPF[2]} {A.xflag}")
            if len(CPF) > 3 and CPF[3] == 1: e("s_mov_b64 exec, -1")
        else:
            lab("L_pfx")
    emit_x()
    lab("L_w")
    e(f"s_mov_b32 m0, s{sMW}")
    if A.wrot:
        e(f"s_add_u32 s{sS}, s{sRW}, s{sTau}")
        e(f"s_mov_b32 s{sO}, s{sS}")
    else:
        e(f"s_mov_b32 s{sO}, s{sRW}")
    lab("L_wl")
    e(f"buffer_load_dwordx4 v{VW}, s[{SW}:{SW+3}], s{sO} offen {A.wflag} lds")
    e("s_addk_i32 m0, 4096")
    if not A.wrot:
        e("s_nop 0")
        e(f"buffer_load_dwordx4 v{VW2}, s[{SW}:{SW+3}], s{sO} offen {A.wflag} lds")
        e("s_addk_i32 m0, 4096")
        e(f"s_lshl4_add_u32 s{sO}, s{sK}, s{sO}")
        e(f"s_cmp_lt_u32 s{sO}, s{SW+2}")
        e("s_cbranch_scc1 L_wl")
    else:
        e(f"s_lshl4_add_u32 s{sT1}, s{sK}, s{sO}")
        e(f"buffer_load_dwordx4 v{VW2}, s[{SW}:{SW+3}], s{sO} offen {A.wflag} lds")
        e("s_addk_i32 m0, 4096")
        e(f"s_sub_u32 s{sO}, s{sT1}, s{SW+2}")
        e(f"s_cselect_b32 s{sO}, s{sT1}, s{sO}")
        e(f"s_cselect_b32 s{sT1}, 0, s{sWS}")
        e(f"s_sub_u32 m0, m0, s{sT1}")
        e(f"s_cmp_lg_u32 s{sO}, s{sS}")
        e("s_cbranch_scc1 L_wl")
    e(f"s_add_u32 s{sMW}, s{sMW}, s{sWS}")
    e(f"s_lshl1_add_u32 s{sRW}, s{sK}, s{sRW}")
    e(f"s_bitset0_b32 s{sRW}, 18")
    e(f"s_setpc_b64 s[{RET}:{RET+1}]")
lab("L_sched")
if A.ts and ops[0][0] == 'w':
    e(f"s_add_u32 s{SX}, s{SX}, s{sB}")
    e(f"s_addc_u32 s{SX+1}, s{SX+1}, 0")
used = {0, 12}
tused = set()
late = []
cur_out = out
def sched_ops(ops):
    for op in ops:
        k, a = op[0], op[1:]
        if k == 'x': e(f"s_call_b64 s[{RET}:{RET+1}], L_x")
        elif k == 'w':
            if A.ts: e(f"s_mov_b32 s{sC}, {int(a or 5)-1}")
            e(f"s_call_b64 s[{RET}:{RET+1}], L_w")
        elif k == 'r': e(f"s_sub_u32 s{sMW}, s{sMW}, {3*WSLOT}")
        elif k == 'b':
            e(f"s_waitcnt vmcnt({int(a)})"); e("s_barrier")
        elif k == 'B': e("s_barrier")
        elif k == 'P':
            e(f"buffer_load_dword v12, v8, s[{SW}:{SW+3}], s{sP} offen")
            if a: e(f"s_lshl1_add_u32 s{sP}, s{sK}, s{sP}")
        elif k == 'Q':
            e("s_bfm_b64 exec, 9, 0"); e(f"buffer_load_dword v12, v9, s[{SX}:{SX+3}], s{sRX} offen {A.xflag}"); e("s_mov_b64 exec, -1")
        elif k == 'C':
            sh = int(a or 7)
            e(f"s_getpc_b64 s[{PC}:{PC+1}]")
            lab("L_pcC")
            e(f"s_add_u32 s{PC}, s{PC}, L_tail-L_pcC")
            e(f"s_addc_u32 s{PC+1}, s{PC+1}, 0")
            e(f"v_lshlrev_b32 v13, {sh}, v0")
            e(f"v_min_u32 v13, L_end-L_tail, v13")
            e(f"global_load_dword v12, v13, s[{PC}:{PC+1}]")
        elif k == 'Z':
            e(f"s_and_b32 s{sSX}, s2, 24"); e(f"s_lshl_b32 s{sSX}, s{sSX}, 5"); e(f"s_add_u32 s{sSX}, s{sSX}, s3")
            e(f"s_mulk_i32 s{sSX}, 72"); e(f"s_add_u32 s{sSX}, s{sSX}, s{sT}"); e(f"s_max_i32 s{sSX}, s{sSX}, 0")
        elif k == 'S':
            e(f"s_add_u32 s{sT1}, s{sSX}, s{sRX}")
            for i in range(int(a[0]), int(a[1])): e(f"s_buffer_load_dwordx2 s[46:47], s[{SX}:{SX+3}], s{sT1} offset:{i*512+60}")
        elif k == 'y': e("s_load_dwordx2 s[8:9], s[0:1], 16")
        elif k == 'Y':
            e("v_lshrrev_b32 v14, 5, v0"); e("v_and_b32 v15, 3, v2"); e("v_lshl_add_u32 v15, v14, 4, v15")
            e("v_xor_b32 v14, v14, v0"); e("v_and_b32 v14, 7, v14"); e("v_lshlrev_b32 v14, 4, v14"); e("v_lshl_add_u32 v14, v15, 7, v14"); e(f"v_add_u32 v14, {WBASE+2*WSLOT}, v14")
            e("v_and_b32 v16, 7, v0"); e("v_lshlrev_b32 v16, 4, v16"); e("v_lshl_add_u32 v15, v15, 9, v16")
            e("s_and_b32 s4, s2, 24"); e(f"s_lshl4_add_u32 s4, s4, s{sT}"); e("s_addk_i32 s4, 4096"); e("v_add_u32 v15, s4, v15")
            e(f"s_add_u32 s10, s{sT}, {4096+64000}"); e(f"s_mov_b32 s11, s{SX+3}"); e(f"s_mov_b32 s{sC}, {A.nb-1}")
            e("s_movk_i32 s5, 512"); e("s_movk_i32 s6, 2048")
            e("s_waitcnt lgkmcnt(0)"); e(f"s_add_u32 s8, s8, s{sB}"); e("s_addc_u32 s9, s9, 0")
        elif k == 'O':
            lab("L_o")
            e("s_barrier"); e("ds_read_b128 v[16:19], v14"); e("v_add_u32 v14, s5, v14"); e(f"s_sub_u32 s{sC}, s{sC}, 1"); e("s_waitcnt lgkmcnt(0)")
            e(f"buffer_store_dwordx4 v[16:19], v15, s[8:11], 0 offen {A.store}"); e("v_add_u32 v15, s6, v15"); e("s_cbranch_scc0 L_o")
        elif k == 'o':
            n = int(a or 1)
            e("s_barrier")
            for i in range(n): e(f"ds_read_b128 v[{16+4*i}:{19+4*i}], v14 offset:{512*i}")
            for i in range(n):
                e(f"s_waitcnt lgkmcnt({n-1-i})")
                e(f"buffer_store_dwordx4 v[{16+4*i}:{19+4*i}], v15, s[8:11], 0 offen offset:{2048*i} {A.store2}")
        elif k == 'q':
            for h in range(2):
                if h == 0: e("s_mov_b32 exec_lo, 0xffff"); e("s_mov_b32 exec_hi, exec_lo")
                else: e("s_not_b64 exec, exec")
                e("s_barrier"); e(f"ds_read_b128 v[16:19], v14"); e("s_waitcnt lgkmcnt(0)")
                e(f"buffer_store_dwordx4 v[16:19], v15, s[8:11], 0 offen {A.store}")
            if a == '1':
                e("s_mov_b64 exec, -1"); e("v_add_u32 v14, s5, v14"); e("v_add_u32 v15, s6, v15")
        elif k == 'T':
            sh = int((a or '9').rstrip('ns')); fl = {'n': 'nt', 's': 'sc1'}.get(a[-1:], '')
            e(f"v_lshl_add_u32 v20, v0, {sh}, s4"); e(f"buffer_load_dword v21, v20, s[8:11], 0 offen {fl}")
        elif k == 't':
            if DIAG: e(f"s_memtime s[{60+2*int(a)}:{61+2*int(a)}]"); tused.add(int(a))
        elif k == 'k': e("s_waitcnt lgkmcnt(0)")
        elif k == 'v': e(f"s_waitcnt vmcnt({int(a)})")
        elif k == 's': stamp_now(int(a)); used.add(int(a))
        else: raise ValueError(op)
def sched_end():
    if DIAG: e("s_branch L_ldiag")
    else: e("s_endpgm")
if 'L' in ops:
    i = ops.index('L')
    sched_ops(ops[1:i]); e("s_branch L_late"); LATE = ops[i+1:]
else:
    sched_ops(ops[1:]); sched_end(); LATE = None
lab("L_end0")
e("s_endpgm")
lab("L_ldend")
def ldiag():
    lab("L_ldiag")
    if tused:
        e("s_waitcnt lgkmcnt(0)")
        for i in range(1, NST):
            if i in tused: e(f"s_mov_b32 s{SC0+i}, s{60+2*i}")
            else: e(f"s_mov_b32 s{SC0+i}, 0")
        for i in range(NST): e(f"s_mov_b32 s{SR0+i}, 0")
        e(f"s_mov_b32 s{SC0}, s54"); e(f"s_mov_b32 s{SR0}, s56")
        e("s_branch L_diag"); return
    e(f"s_mov_b32 s{SC0}, s54"); e(f"s_mov_b32 s{SR0}, s56")
    for i in range(NST):
        if i not in used: e(f"s_mov_b32 s{SC0+i}, 0"); e(f"s_mov_b32 s{SR0+i}, 0")
    e("s_branch L_diag")

if A.koff < 0: out.append(".p2align 6")
out.append("@CPAD")
lab("L_consumer")
S_T0, S_E0B, S_WAVE, S_BATCH = 24, 25, 26, 27
S_TMP = 28
S_IT = 36
S_DX, S_DW = 37, 38
S_C1, S_C2, S_MASK = 39, 40, 41
S_WP, S_WM2, S_WC = 42, 43, 44
XR = [0, 48]
WR = [96, 136]
ACC = 176
VXB, VWF, VWG, VO0, VO1, VO2 = 240, 241, 242, 243, 244, 245
TT, TU = 246, 250
S_WM, S_WN = S_TMP, S_TMP + 1
if A.cwarm:
    e("s_getpc_b64 s[34:35]")
    lab("L_pcw")
    e("s_lshr_b32 s24, s2, 3"); e("s_lshl_b32 s24, s24, 9"); e("s_lshl1_add_u32 s24, s3, s24")
    e(f"s_min_u32 s24, s24, (L_cend-{NAME}_kernel-68)&0xffffff80")
    e(f"s_sub_u32 s34, s34, L_pcw-{NAME}_kernel"); e("s_subb_u32 s35, s35, 0")
    e("s_load_dwordx2 s[46:47], s[34:35], s24 offset:60")
if not A.xst: e("s_load_dwordx2 s[8:9], s[0:1], 16")
if A.cpx or A.cpw:
    assert A.rot == 7
    e("s_and_b32 s24, s2, 3"); e("s_lshr_b32 s30, s2, 5"); e("s_lshl3_add_u32 s24, s24, s30"); e("s_mul_i32 s24, s24, 64000")
    e("s_and_b32 s25, s2, 24"); e("s_lshl_b32 s25, s25, 5"); e("s_add_u32 s25, s25, s3"); e("s_mulk_i32 s25, 72")
    e("s_add_u32 s25, s25, s24"); e(f"s_addk_i32 s25, {-(4096+18432) & 0xffff:#x}"); e("s_max_i32 s25, s25, 0")
    e("s_andn2_b32 s26, 1, s2"); e("s_lshl_b32 s27, s26, 7"); e("s_add_u32 s25, s25, s27")
    e(f"s_mov_b32 s{SX+2}, 2048000"); e("s_bitcmp1_b32 s2, 2"); e(f"s_cselect_b32 s28, s{SX+2}, 0"); e(f"s_lshl_b32 s{SX+3}, 1, 17")
    if A.cpw:
        ph, nw = map(int, A.cpw.split(':'))
        e("s_lshr_b32 s29, s2, 3"); e("s_lshl_b32 s29, s29, 8"); e("s_add_u32 s29, s29, s3"); e("s_addk_i32 s29, 0xff00")
        e("s_mul_i32 s29, s29, 20")
        e("s_lshr_b32 s30, s29, 15"); e("s_and_b32 s29, s29, 0x7fff"); e("s_lshl_b32 s30, s30, 18"); e("s_add_u32 s29, s29, s30")
        e("s_lshl_b32 s30, s26, 16"); e("s_add_u32 s29, s29, s30")
        e(f"s_lshl_b32 s{SW+3}, 1, 17"); e(f"s_lshl_b32 s{SW+2}, 5, 18")
    e("s_waitcnt lgkmcnt(0)")
    e(f"s_add_u32 s{SX}, s{SX}, s28"); e(f"s_addc_u32 s{SX+1}, s{SX+1}, 0")
    if A.cprog:
        for op in A.cprog.split():
            if op == 'k': e("s_waitcnt lgkmcnt(0)")
            elif op[0] == 'x':
                for i in range(9): e(f"s_buffer_load_dwordx2 s[46:47], s[{SX}:{SX+3}], s25 offset:{i*512+128*int(op[1:])+60}")
            elif op[0] == 'w':
                for i in range(10): e(f"s_buffer_load_dwordx2 s[46:47], s[{SW}:{SW+3}], s29 offset:{int(op[1:])*32768+i*128+60}")
            elif op[0] == 'B': e("s_barrier")
            elif op[0] == 'd': e(f"s_buffer_load_dword s46, s[{SX}:{SX+3}], s25 offset:{512*int(op[1:] or 0)}")
            elif op[0] == 'X':
                for i in range(int(op[1]), int(op[2])): e(f"s_buffer_load_dwordx2 s[46:47], s[{SX}:{SX+3}], s25 offset:{i*512+128+60}")
    else:
      for i in range(A.cpx): e(f"s_buffer_load_dwordx2 s[46:47], s[{SX}:{SX+3}], s25 offset:{i*512+128+60}")
      if A.cpw:
        for i in range(nw): e(f"s_buffer_load_dwordx2 s[46:47], s[{SW}:{SW+3}], s29 offset:{ph*32768+i*128+60}")
if LATE is not None and not A.lend:
    e("s_branch L_cons2")
    lab("L_late")
    sched_ops(LATE); sched_end()
    lab("L_cons2")
if DIAG:
    for i in range(NST): e(f"s_mov_b32 s{SC0+i}, 0"); e(f"s_mov_b32 s{SR0+i}, 0")
e("v_and_b32 v0, 63, v0")
e(f"s_bfe_u32 s{S_WN}, s3, 0x20006")
if not A.xst:
    e(f"s_and_b32 s{S_T0}, s2, 3")
    e(f"s_lshr_b32 s{S_TMP+2}, s2, 5")
    e(f"s_lshl3_add_u32 s{S_T0}, s{S_T0}, s{S_TMP+2}")
    e(f"s_mul_i32 s{S_T0}, s{S_T0}, 125")
    e(f"s_and_b32 s{S_E0B}, s2, 24")
    e(f"s_lshl_b32 s{S_E0B}, s{S_E0B}, 4")
    e(f"s_mov_b32 s{SO+2}, 2048000")
    e("s_bitcmp1_b32 s2, 2")
    e(f"s_cselect_b32 s{S_BATCH}, s{SO+2}, 0")
    e(f"s_mov_b32 s{SO+3}, 0x20000")
e("v_and_b32 v2, 15, v0")
e("v_lshrrev_b32 v3, 4, v0")
e("v_lshrrev_b32 v4, 1, v2")
e("v_and_b32 v5, 1, v2")
e(f"v_mul_u32_u24 v6, {2*XBLK}, v4")
e("v_lshl_add_u32 v6, v5, 7, v6")
e(f"v_lshl_add_u32 v{VXB}, v3, 4, v6")
e("v_bfe_u32 v6, v0, 2, 2")
e("v_lshl_add_u32 v7, v3, 3, v6")
e("v_lshlrev_b32 v7, 8, v7")
e(f"v_xor_b32 v8, s{S_WN}, v6")
e("v_lshl_add_u32 v7, v8, 5, v7")
e("v_and_b32 v9, 1, v3")
e("v_lshl_add_u32 v7, v9, 7, v7")
e("v_and_b32 v8, 3, v0")
e("v_lshl_add_u32 v7, v8, 3, v7")
e(f"v_add_u32 v{VWF}, {WBASE}, v7")
e("v_xor_b32 v7, 0x80, v7")
e(f"v_add_u32 v{VWG}, {WBASE}, v7")
if A.xst:
    e("v_lshl_add_u32 v6, v4, 4, v5"); e("v_lshrrev_b32 v8, 1, v3"); e(f"v_lshl_add_u32 v8, s{S_WN}, 1, v8"); e("v_xor_b32 v8, v8, v4")
    e("v_lshlrev_b32 v8, 4, v8"); e("v_lshl_add_u32 v6, v6, 7, v8"); e(f"v_lshl_add_u32 v{VO0}, v9, 3, v6"); e(f"v_add_u32 v{VO0}, {WBASE+2*WSLOT}, v{VO0}")
else:
    e("v_lshl_add_u32 v6, v4, 4, v5")
    e("v_lshl_add_u32 v6, v9, 1, v6")
    e("v_cmp_lt_u32 vcc, 0x70, v6")
    e(f"v_add_u32 v6, s{S_T0}, v6")
    e("v_lshlrev_b32 v6, 9, v6")
    e("v_lshrrev_b32 v8, 1, v3")
    e("v_lshl_add_u32 v6, v8, 4, v6")
    e(f"s_lshl_b32 s{S_TMP+3}, s{S_WN}, 5")
    e(f"s_add_u32 s{S_TMP+3}, s{S_TMP+3}, s{S_E0B}")
    e(f"v_add_u32 v{VO0}, s{S_TMP+3}, v6")
    e("v_bfrev_b32 v7, 1")
e(f"s_mov_b32 s{S_DX}, {XSLOT}")
e(f"s_mov_b32 s{S_WP}, {WSLOT}")
e(f"s_mov_b32 s{S_WM2}, {-2*WSLOT & 0xffffffff}")
e(f"s_mov_b32 s{S_WC}, 1")
if not A.xst: e(f"v_cndmask_b32 v{VO2}, v{VO0}, v7, vcc")
for r in range(0, 0 if A.nz else 64, 2):
    e(f"v_mov_b64 v[{ACC+r}:{ACC+r+1}], 0")
if A.epi == 8:
    e(f"s_mov_b32 s{S_C1}, 0xc038aa3b")
    e(f"s_mov_b32 s{S_MASK}, 0x4c000000")
    e("v_mov_b32 v244, 0xc1d00000")
    e("s_setreg_imm32_b32 hwreg(HW_REG_MODE, 8, 1), 0")
else:
    e(f"s_mov_b32 s{S_C1}, 0x4038aa3b")
    e(f"s_mov_b32 s{S_MASK}, 0x7fffffff")
e(f"s_mov_b32 s{S_C2}, 0xbfb8aa3b")
e(f"s_mov_b32 s{S_IT}, 0")
S_P1, S_P2, S_ONE = 30, 32, 34
for i, v in enumerate([f"s{S_C1}", f"s{S_C1}", f"s{S_C2}", f"s{S_C2}"] + ([f"s{S_MASK}"]*2 if A.epi == 8 else ["1.0", "1.0"])): e(f"s_mov_b32 s{30+i}, {v}")
if not (A.cpx or A.cpw) and (DIAG or not A.xst): e("s_waitcnt lgkmcnt(0)")
if DIAG:
    e(f"s_mov_b32 s{SC0}, s54"); e(f"s_mov_b32 s{SR0}, s56"); e("s_mov_b32 m0, 2")
if not A.xst:
    e(f"s_add_u32 s{SO}, s8, s{S_BATCH}")
    e(f"s_addc_u32 s{SO+1}, s9, 0")

def xreg(s, f): return XR[s] + 4*f
def wreg(s, t, c): return WR[s] + 8*t + 4*c
def areg(f, c): return ACC + 8*f + 4*c
def rd_x(s, f, ks):
    r = xreg(s, f)
    return (('x', f), f"ds_read_b128 v[{r}:{r+3}], v{VXB} offset:{(f>>2)*XBLK + (f&3)*256 + ks*64}")
def rd_w(s, t, c, u, wslot):
    r = wreg(s, t, c) + 2*u
    return (('w', t, c), f"ds_read_b64_tr_b16 v[{r}:{r+1}], v{VWG if c else VWF} offset:{t*8192 + u*1024}")
def mf(s, f, c, t):
    a = areg(f, c); w = wreg(s, t, c); x = xreg(s, f+t)
    return f"v_mfma_f32_16x16x32_bf16 v[{a}:{a+3}], v[{w}:{w+3}], v[{x}:{x+3}], v[{a}:{a+3}]"
def order(kind):
    if kind == 't': return [(f, c, t) for t in range(5) for c in range(2) for f in range(8)]
    if kind == 'a': return [(f, c, t) for f in range(8) for c in range(2) for t in range(5)]
    if kind == 'A': return [(f, c, t) for f in range(8) for t in range(5) for c in range(2)]
    raise ValueError(kind)
def reads_for(s, ks, wslot, seq):
    l = []; seen = set()
    for (f, c, t) in seq:
        if ('w', t, c) not in seen:
            seen.add(('w', t, c)); l += [rd_w(s, t, c, 0, wslot), rd_w(s, t, c, 1, wslot)]
        if ('x', f+t) not in seen:
            seen.add(('x', f+t)); l.append(rd_x(s, f+t, ks))
    assert len(l) == 32
    return l
def need_waits(seq, rd, upto):
    last = {}
    for i, (key, _) in enumerate(rd): last[key] = i
    w = {}; cur = 99
    for i, (f, c, t) in enumerate(seq[:upto]):
        n = len(rd) - 1 - max(last[('w', t, c)], last[('x', f+t)])
        n = min(n, 15)
        if n < cur: w[i] = n; cur = n
    return w
SEQ = order(A.order)
def step(cur, rd_cur, rd, pre=None):
    waits = need_waits(SEQ, rd_cur, A.bar)
    n = 80
    slots = {}
    span = A.rdend - A.bar + 1
    for k in range(32):
        g = A.bar + (k * span) // 32
        slots.setdefault(g, []).append(rd[k][1])
    for g in range(n):
        if g in waits: e(f"s_waitcnt lgkmcnt({waits[g]})")
        if g == A.bar - 10: stamp_issue()
        if g == A.bar:
            e("s_waitcnt lgkmcnt(0)")
            e("s_barrier")
            stamp_commit()
        f, c, t = SEQ[g]
        e(mf(cur, f, c, t))
        if pre and 12 <= g < 12 + len(pre): e(pre[g-12])
        for r in slots.get(g, []): e(r)


out.append("@PADVISIT")
e("s_barrier")
stamp_now(1)
rdA = reads_for(0, 0, 0, SEQ)
rdB = reads_for(1, 1, 1, SEQ)
WADV = [f"s_add_u32 s{S_WC}, s{S_WC}, 1", f"s_cmp_eq_u32 s{S_WC}, 3", f"s_cselect_b32 s{S_DW}, s{S_WM2}, s{S_WP}", f"s_cselect_b32 s{S_WC}, 0, s{S_WC}",
        f"v_add_u32 v{VWF}, s{S_DW}, v{VWF}", f"v_add_u32 v{VWG}, s{S_DW}, v{VWG}"]

class LQ:
    def __init__(s): s.ops = []; s.done = -1
    def issue(s, key, txt): s.ops.append(key); e(txt)
    def pos(s, key): return max(i for i, k in enumerate(s.ops) if k == key)
    def has(s, key): return key in s.ops
    def wait(s, p):
        if p <= s.done: return
        n = len(s.ops) - 1 - p
        if n > 15: n = 15
        e(f"s_waitcnt lgkmcnt({n})"); s.done = len(s.ops) - 1 - n
    def drain(s): e("s_waitcnt lgkmcnt(0)"); s.done = len(s.ops) - 1

def phase0():
    seen0 = set()
    if A.p0 == 'a':
        seq = SEQ; rd = reads_for(0, 0, 0, seq)
    else:
        toks = A.p0.split(',')
        rd = []; seq = []; have = set()
        for tk in toks:
            if tk[0] == 'x': rd.append(rd_x(0, int(tk[1:]), 0)); have.add(('x', int(tk[1:])))
            else:
                t, c = int(tk[1]), int(tk[2]); rd += [rd_w(0, t, c, 0, 0), rd_w(0, t, c, 1, 0)]; have.add(('w', t, c))
            for (f, c, t) in SEQ:
                if (f, c, t) not in seq and ('w', t, c) in have and ('x', f+t) in have: seq.append((f, c, t))
        assert len(seq) == 80 and len(rd) == 32
    q = LQ()
    k = 0
    while k < A.p0n: q.issue(rd[k][0], rd[k][1]); k += 1
    bar = A.p0bar
    slots = {}
    span = A.rdend - bar + 1
    for j in range(32): slots.setdefault(bar + (j * span) // 32, []).append(rdB[j][1])
    pre = [f"v_add_u32 v{VWF}, s{S_WP}, v{VWF}", f"v_add_u32 v{VWG}, s{S_WP}, v{VWG}"]
    cnt = {}
    for key, _ in rd: cnt[key] = cnt.get(key, 0) + 1
    for g in range(80):
        f, c, t = seq[g]
        if g < bar:
            for key in (('w', t, c), ('x', f+t)):
                assert q.ops.count(key) == cnt[key], (g, key)
            q.wait(max(q.pos(('w', t, c)), q.pos(('x', f+t))))
        if g == bar - 10: stamp_issue()
        if g == bar:
            assert k == 32 and not pre
            q.drain(); e("s_barrier"); stamp_commit()
        m_ = mf(0, f, c, t)
        if A.nz and (f, c) not in seen0: m_ = m_[:m_.rindex(',')] + ", 0"; seen0.add((f, c))
        e(m_)
        n = 0
        while k < 32 and n < A.p0r: q.issue(rd[k][0], rd[k][1]); k += 1; n += 1
        if k == 32 and n == 0 and pre: e(pre.pop(0))
        for r in slots.get(g, []): e(r)
phase0()
if A.lal > 0: out.append(".p2align %d" % A.lal)
lab("L_loop")
step(1, rdB, rdA, pre=WADV + [f"v_add_u32 v{VXB}, s{S_DX}, v{VXB}", f"s_sub_u32 s{S_DX}, 0, s{S_DX}", f"s_add_u32 s{S_IT}, s{S_IT}, 1"])
step(0, rdA, rdB, pre=WADV)
e(f"s_cmp_lt_u32 s{S_IT}, 2")
e("s_cbranch_scc1 L_loop")

VK = 244
def epi8(f):
    F = areg(f, 0); G = areg(f, 1); P = F
    def pr(b, r): return f"v[{b+r}:{b+r+1}]"
    gs = [
        ([f"v_fma_f32 v{F+r}, s{S_C1}, v{F+r}, v{VK}" for r in range(4)], 4, 'F', [f"v_pk_fma_f32 {pr(F,r)}, {pr(F,r)}, s[{S_P1}:{S_P1+1}], v[{VK}:{VK+1}] op_sel_hi:[1,1,0]" for r in (0, 2)]),
        ([f"v_exp_f32 v{F+r}, v{F+r} clamp" for r in range(4)], 8, '', None),
        ([f"v_fma_f32 v{F+r}, v{F+r}, s{S_MASK}, 0.5" for r in range(4)], 4, '', [f"v_pk_fma_f32 {pr(F,r)}, {pr(F,r)}, s[{S_ONE}:{S_ONE+1}], 0.5 op_sel_hi:[1,1,0]" for r in (0, 2)]),
        ([f"v_mul_f32 v{G+r}, s{S_C2}, v{G+r}" for r in range(4)], 4, 'G', [f"v_pk_mul_f32 {pr(G,r)}, {pr(G,r)}, s[{S_P2}:{S_P2+1}]" for r in (0, 2)]),
        ([f"v_exp_f32 v{G+r}, v{G+r}" for r in range(4)], 8, '', None),
        ([f"v_fma_f32 v{G+r}, v{F+r}, v{G+r}, v{F+r}" for r in range(4)], 4, '', [f"v_pk_fma_f32 {pr(G,r)}, {pr(F,r)}, {pr(G,r)}, {pr(F,r)}" for r in (0, 2)]),
        ([f"v_rcp_f32 v{G+r}, v{G+r}" for r in range(4)], 8, '', None),
        ([f"v_fma_f32 v{G+r}, -v{F+r}, v{G+r}, v{G+r}" for r in range(4)], 4, '', [f"v_pk_fma_f32 {pr(G,r)}, {pr(F,r)}, {pr(G,r)}, {pr(G,r)} neg_lo:[1,0,0] neg_hi:[1,0,0]" for r in (0, 2)]),
    ]
    l = []
    for (txts, cost, k, pks) in gs:
        for r, t in enumerate(txts):
            l.append((t, cost, k, f, (pks[r // 2] if pks and r % 2 == 0 else None)))
    l.append((f"v_cvt_pk_bf16_f32 v{P}, v{G}, v{G+1}", 4, '', f, None))
    l.append((f"v_cvt_pk_bf16_f32 v{P+1}, v{G+2}, v{G+3}", 4, '', f, None))
    l.append((f"ds_write_b64 v{VO0}, v[{P}:{P+1}] offset:{f*256}", 0 if A.wfree else 4, '', f, None))
    return l

ms = []
for tk in A.tseq.split():
    f = int(tk[0])
    if tk[1:] == '*': ph = [5, 6, 7]
    else: ph = [int(ch) for ch in tk[1:]]
    for c in range(2):
        for p in ph:
            for t in range(5): ms.append((p, f, c, t))
assert sorted(ms) == sorted((p, f, c, t) for p in (5, 6, 7) for f in range(8) for c in range(2) for t in range(5))
NM = len(ms)
WB = {5: WR[1], 6: WR[0], 7: 0}
def twreg(p, t, c): return WB[p] + 8*t + 4*c
first = {}; last = {}; lastacc = {}
for g, (p, f, c, t) in enumerate(ms):
    for key in (('w', p, t, c), ('x', p, f+t)):
        first.setdefault(key, g); last[key] = g
    lastacc[(f, c)] = g
loc = {('x', 5, j): xreg(1, j) for j in range(A.keep)}
pool = [40, 44, 248, 252] + [xreg(1, j) for j in range(A.keep, 12)]
todo = sorted([k for k in first if not (k[1] == 5 and (k[0] == 'w' or k[2] < A.keep))], key=lambda k: (first[k], k[0] == 'x'))
q = LQ()
for (key, _) in rdB: q.ops.append(('w', 5) + key[1:] if key[0] == 'w' else ('x', 5, key[1]) if key[1] < A.keep else ('dead', key[1]))
nrd = {k: (2 if k[0] == 'w' else 1) for k in first}
got = {k: nrd[k] for k in first if k not in todo}
lab("L_tail")
wrote = {}; fin = set(); pend = []; nxt = 0; syncs = []
def states_since(pos):
    n = 0
    for l in out[pos+1:]:
        m = re.match(r"\s*s_nop (\d+)", l)
        n += (int(m.group(1)) + 1) if m else 1
    return n
def emit_epi(op, txt=None):
    k, f = op[2], op[3]
    if k:
        d = states_since(wrote[(f, 0 if k == 'F' else 1)])
        if d < 8: e(f"s_nop {8-d-1}")
    tx = txt or op[0]
    if tx.startswith("ds_write"):
        q.issue(('st', f), tx); pool.extend([areg(f, 1), areg(f, 0)])
    else: e(tx)
def ready(op):
    k, f = op[2], op[3]
    if not k: return True
    c = 0 if k == 'F' else 1
    return (f, c) in fin and states_since(wrote[(f, c)]) >= 8
misc = [f"v_add_u32 v{VWF}, s{S_WM2}, v{VWF}", f"v_add_u32 v{VWG}, s{S_WM2}, v{VWG}"]
w6left = 20; adv7 = False
minlead = 99; issued_at = {}; ntst = 0
for g, (p, f, c, t) in enumerate(ms):
    if g in (A.b6 - 10, A.b7 - 10) : stamp_issue()
    if g in (A.b6, A.b7):
        if A.b6 < 10 and g == A.b6: stamp_issue()
        if g == A.b6 or (DIAG and not A.tst): q.drain()
        e("s_barrier"); stamp_commit()
    if A.tst and g >= A.tst0 and (g - A.tst0) % A.tst == 0 and ntst < 10:
        ntst += 1; e(f"s_memtime s[{60+2*ntst}:{61+2*ntst}]")
    kw, kx = ('w', p, t, c), ('x', p, f+t)
    assert got.get(kw, 0) == 2 and got.get(kx, 0) == 1, (g, kw, kx)
    need = max(q.pos(kw), q.pos(kx))
    if need > q.done:
        for (p2, f2, c2, t2) in ms[g+1:g+3]:
            k2w, k2x = ('w', p2, t2, c2), ('x', p2, f2+t2)
            if got.get(k2w, 0) == 2 and got.get(k2x, 0) == 1 and issued_at.get(k2w, -99) <= g - A.lead and issued_at.get(k2x, -99) <= g - A.lead: need = max(need, q.pos(k2w), q.pos(k2x))
        q.wait(need)
    a = areg(f, c); w = twreg(p, t, c); x = loc[kx]
    e(f"v_mfma_f32_16x16x32_bf16 v[{a}:{a+3}], v[{w}:{w+3}], v[{x}:{x+3}], v[{a}:{a+3}]")
    wrote[(f, c)] = len(out) - 1

    if lastacc[(f, c)] == g: fin.add((f, c))
    if last[kx] == g: pool.append(loc[kx])
    quota = A.quota
    if misc and (not adv7 or w6left == 0):
        e(misc.pop(0)); quota -= 4
    n = 0
    while todo and n < A.trd:
        key = todo[0]
        if key[1] >= 6 and g < A.b6: break
        if key[0] == 'w':
            if misc and (key[1] == 7 or not adv7): break
            if key[1] == 7 and (g < A.b7 or not adv7):
                alt = [k for k in todo if k[0] == 'x' or k[1] == 6]
                if not alt or first[alt[0]] - g > A.ahead: break
                key = alt[0]
        if key[0] == 'w':
            u = got.get(key, 0); r = twreg(key[1], key[2], key[3]) + 2*u
            q.issue(key, f"ds_read_b64_tr_b16 v[{r}:{r+1}], v{VWG if key[3] else VWF} offset:{key[2]*8192 + u*1024}")
            got[key] = u + 1
            if key[1] == 6:
                w6left -= 1
                if w6left == 0:
                    misc = [f"v_add_u32 v{VWF}, s{S_WP}, v{VWF}", f"v_add_u32 v{VWG}, s{S_WP}, v{VWG}"]; adv7 = True
            if got[key] == 2: todo.remove(key); issued_at[key] = g; minlead = min(minlead, first[key] - g)
        else:
            if not pool or first[key] - g > A.ahead: break
            r = pool.pop(0); loc[key] = r; j = key[2]
            off = (j >> 2)*XBLK + (j & 3)*256 + (0 if key[1] == 6 else 64) + (0 if key[1] == 5 else XSLOT)
            q.issue(key, f"ds_read_b128 v[{r}:{r+3}], v{VXB} offset:{off}")
            got[key] = 1; todo.remove(key); issued_at[key] = g; minlead = min(minlead, first[key] - g)
            if first[key] - g < 6: sys.stderr.write(f"short lead {key} at {g}: {first[key]-g}\n")
        n += 1
    if syncs and g - syncs[0] >= A.sd:
        syncs.pop(0); q.drain(); e("s_barrier"); quota = A.bq
    while quota > 0 or (pend and pend[0][1] == 0):
        if not pend:
            if nxt < 8 and (nxt, 0) in fin: pend = epi8(nxt); nxt += 1
            else: break
        if pend[0][1] > quota or not ready(pend[0]): break
        op = pend.pop(0); emit_epi(op); quota -= op[1]
        if op[0].startswith("ds_write") and str(op[3]) in A.bat: syncs.append(g)
stamp_issue()
if A.tst:
    ntst += 1; e(f"s_memtime s[{60+2*ntst}:{61+2*ntst}]")
rest = list(pend)
for ff in range(nxt, 8): rest += epi8(ff)
sys.stderr.write(f"min lead {minlead}, exposed ops {len(rest)}\n")
i = 0
syncs = [0 for _ in syncs]
while i < len(rest):
    op = rest[i]
    if syncs and i - syncs[0] >= A.se:
        syncs.pop(0); e("s_waitcnt lgkmcnt(0)"); e("s_barrier")
    if A.pk and op[4]:
        emit_epi(op, op[4]); i += 2
    else:
        emit_epi(op); i += 1
    if op[0].startswith("ds_write") and str(op[3]) in A.bat: syncs.append(i)
for _ in syncs:
    e("s_waitcnt lgkmcnt(0)"); e("s_barrier")
if DIAG:
    if A.tst:
        e("s_waitcnt lgkmcnt(0)")
        for i in range(1, 12): e(f"s_mov_b32 s{SC0+i}, s{60+2*i}")
        for i in range(12, 16): e(f"s_mov_b32 s{SC0+i}, 0")
        for i in range(1, 16): e(f"s_mov_b32 s{SR0+i}, 0")
        e(f"s_mov_b32 s{SR0}, s56")
    e("s_waitcnt lgkmcnt(0)"); stamp_commit(10)
    stamp_now(11)
    e("s_waitcnt vmcnt(0)")
    lab("L_diag")
    e("s_load_dwordx2 s[58:59], s[0:1], 32")
    e("s_waitcnt vmcnt(0) lgkmcnt(0)")
    stamp_now(12)
    e("s_barrier")
    e(f"v_mbcnt_lo_u32_b32 v0, -1, 0")
    e(f"v_mbcnt_hi_u32_b32 v0, -1, v0")
    e("s_mov_b32 s52, s58"); e("s_mov_b32 s53, s59"); e("s_mov_b32 s54, 0x100000"); e("s_mov_b32 s55, 0x20000")
    e("v_mov_b32 v1, 0")
    vals = [f"s{SC0+i}" for i in range(NST)] + [f"s{SR0+i}" for i in range(NST)]
    for i, s in enumerate(vals):
        e(f"v_mov_b32 v2, {s}")
        e(f"v_cmp_eq_u32 vcc, {i}, v0")
        e("s_nop 1")
        e("v_cndmask_b32 v1, v1, v2, vcc")
    e("s_lshl_b32 s56, s%d, 3" % (48 if A.ntx else 2))
    e("s_lshr_b32 s49, s3, 6")
    e("s_add_u32 s56, s56, s49")
    e("s_lshl_b32 s56, s56, 7")
    e("v_lshlrev_b32 v3, 2, v0")
    e("v_cmp_gt_u32 vcc, 32, v0")
    e("s_and_saveexec_b64 s[4:5], vcc")
    e("buffer_store_dword v1, v3, s[52:55], s56 offen")
    e("s_waitcnt vmcnt(0)")
if A.dly:
    mk, n = map(int, A.dly.split(','))
    e("s_and_b32 s4, s2, 7"); e("s_lshl_b32 s4, 1, s4"); e(f"s_and_b32 s4, s4, {mk}"); e("s_cbranch_scc0 L_end")
    e(f"s_mov_b32 s4, {n}"); lab("L_dly"); e("s_sub_u32 s4, s4, 1"); e("s_cbranch_scc0 L_dly")
lab("L_end")
e("s_endpgm")
if LATE is not None and A.lend:
    lab("L_late")
    sched_ops(LATE); sched_end()
if DIAG: ldiag()
lab("L_cend")
if A.pad: out.append(f".fill {A.pad//4}, 4, 0xbf810000")

footer = f"""
.section .rodata,"a"
.p2align 6
.amdhsa_kernel {NAME}_kernel
  .amdhsa_next_free_vgpr 256
  .amdhsa_next_free_sgpr 96
  .amdhsa_accum_offset 256
  .amdhsa_group_segment_fixed_size 0
  .amdhsa_kernarg_size 40
  .amdhsa_user_sgpr_count 2
  .amdhsa_user_sgpr_kernarg_segment_ptr 1
  .amdhsa_system_sgpr_workgroup_id_x 1
.end_amdhsa_kernel
"""

def labels(text):
    import subprocess, tempfile, os
    d = tempfile.mkdtemp()
    open(d + "/a.s", "w").write(text)
    subprocess.check_call(["clang", "-x", "assembler", "-target", "amdgcn-amd-amdhsa", "-mcpu=gfx950", "-c", d + "/a.s", "-o", d + "/a.o"])
    o = subprocess.check_output(["llvm-objdump", "-t", d + "/a.o"], text=True)
    r = {}
    for l in o.splitlines():
        p = l.split()
        if len(p) >= 5 and p[-1].startswith("L_"): r[p[-1]] = int(p[0], 16)
    return r
def addrs(text):
    import subprocess, tempfile
    d = tempfile.mkdtemp()
    open(d + "/a.s", "w").write(text)
    subprocess.check_call(["clang", "-x", "assembler", "-target", "amdgcn-amd-amdhsa", "-mcpu=gfx950", "-c", d + "/a.s", "-o", d + "/a.o"])
    o = subprocess.check_output(["llvm-objdump", "-t", d + "/a.o"], text=True)
    r = {}
    for l in o.splitlines():
        p = l.split()
        if len(p) >= 5 and (p[-1].startswith("Z_") or p[-1] == NAME + "_kernel"): r[p[-1]] = int(p[0], 16)
    return r
def visit(n):
    if n == 0: return []
    l = ["s_mov_b64 vcc, -1"]
    if n >= 2: l += ["s_bitcmp1_b32 s3, 6", "s_cbranch_scc1 L_pad1"]
    if n >= 3: l += ["s_bitcmp1_b32 s3, 7", "s_cbranch_scc1 L_pad2"]
    l += ["s_branch L_pad0"]
    return ["    " + x for x in l] + ["L_padret:", "    s_mov_b64 vcc, 0"]
ic = out.index("@CPAD")
if A.lal < 0:
    out[ic] = ""
    iv = out.index("@PADVISIT")
    t0 = header + "\n".join(out[:iv] + visit(A.pads) + out[iv+1:] + [f"L_pad{j}:" for j in range(3)]) + "\n" + footer
    lb0 = labels(t0); m_ = 1 << -A.lal
    out[ic] = ".fill %d, 4, 0xbf810000" % (((-lb0["L_loop"]) % m_) // 4)
else: out[ic] = ""
iv = out.index("@PADVISIT")
base = out[:iv], out[iv+1:]
npad = 0
if A.pads:
    for npad in ((A.pads,) if A.lal < 0 else (1, 2, 3)):
        pre_ = base[0] + visit(npad); post = list(base[1]); k = 0; ok = True
        while True:
            stub = [f"L_pad{j}:" for j in range(k, npad)]
            lines = pre_ + [x for i, l in enumerate(post) for x in ([f"Z_{i}:", l] if l.startswith("    ") else [l])] + stub
            ad = addrs(header + "\n".join(lines) + "\n" + footer)
            k0 = ad[NAME + "_kernel"]
            endi = post.index("L_diag:" if DIAG else "L_end:")
            rel = [(i, ad[f"Z_{i}"] - k0 + KOFF) for i in range(endi) if post[i].startswith("    ")]
            first_page = rel[0][1] // 4096
            tgt = (first_page + 1 + k) * 4096 + A.padoff
            c = [i for i, a in rel if a >= tgt]
            if not c: break
            if k == npad: ok = False; break
            post[c[0]:c[0]] = [f"L_pad{k}:", "    s_cbranch_vccnz L_padret"]; k += 1
        if ok and k == npad: out = pre_ + post; break
    else: raise ValueError("pads")
else:
    out = base[0] + base[1]
text = header + "\n".join(out) + "\n" + footer
lb = labels(text)
k0 = addrs(text)[NAME + "_kernel"]
sys.stderr.write("npad %d " % npad + " ".join("%s %x" % (k, v - k0 + KOFF) for k, v in sorted(lb.items(), key=lambda kv: kv[1]) if k in ("L_consumer", "L_loop", "L_tail", "L_end", "L_late", "L_cend", "L_pad0", "L_pad1", "L_pad2", "L_ldend")) + "\n")
if A.cw:
    need = lb["L_pc"] + 255 * A.cw + 64 - lb["L_cend"]
    if need > 0: text = text.replace("L_cend:\n", "L_cend:\n.fill %d, 4, 0xbf810000\n" % ((need + 3) // 4))
    else: sys.stderr.write("WARNING: warm range ends %d bytes before the code end\n" % (-need))
sys.stdout.write(text)
```

```python
import sys, argparse, re

ap = argparse.ArgumentParser()
ap.add_argument("--diag", action="store_true")
ap.add_argument("--loader", default="w x w b10 x b5 w b0 r w x b5 w b0 w x b5 r w b0 w b0")
ap.add_argument("--store", default="nt", help="store cache flags")
ap.add_argument("--order", default="a", help="main-step MFMA order")
ap.add_argument("--bar", type=int, default=40, help="MFMA index of the mid-step barrier")
ap.add_argument("--rdend", type=int, default=74, help="last MFMA gap carrying a read")
ap.add_argument("--lag", type=int, default=1)
ap.add_argument("--xflag", default="nt", help="cache flags on X DMA")
ap.add_argument("--wflag", default="", help="cache flags on W DMA")
ap.add_argument("--pk", type=int, default=1)
ap.add_argument("--quota", type=int, default=8)
ap.add_argument("--pad", type=int, default=0)
ap.add_argument("--cw", type=int, default=0, help="code warm stride (bytes per lane, 0=off)")
ap.add_argument("--epi", type=int, default=9)
ap.add_argument("--tord", default="a", help="tail group order: a (chain) | t")
ap.add_argument("--dbg", default="", help="diagnostic tail edits: s=no store/permlane in gaps, t=trans->mov, w=waits right after MFMA")
ap.add_argument("--pfw", default="", help="p0:n vector L2 prefetch of W phases")
ap.add_argument("--pfx", default="", help="c0:n vector L2 prefetch of X blocks")
ap.add_argument("--pfpos", default="first", help="first | op P in loader")
ap.add_argument("--rot", type=int, default=1)
ap.add_argument("--ntx", type=int, default=0, help="xor wg id with this (diagnostic remap)")
ap.add_argument("--cpf", default="", help="p0:n[:c0[:nx]] cooperative prefetch: waves<n fetch W phase p0+w, wave 3 fetches X chunks c0..")
ap.add_argument("--ts", type=int, default=0, help="tap-stream W routine (ops wN = N taps)")
ap.add_argument("--pf1", type=int, default=0, help="prefetch own tap of W1 first")
ap.add_argument("--wrot", type=int, default=0, help="tap rotation by m-tile")
ap.add_argument("--dly", default="", help="DIAGNOSTIC mask,n : end delay loop for xcds in mask")
ap.add_argument("--rotl", default="", help="8 digits: rotation per wg&7")
ap.add_argument("--cpx", type=int, default=0, help="consumer scalar prefetch of X1: n loads per wave")
ap.add_argument("--cpw", default="", help="consumer scalar prefetch of W: phase:n loads per wave")
ap.add_argument("--pre", type=int, default=0)
ap.add_argument("--xst", type=int, default=0, help="stores through LDS by the loader waves")
ap.add_argument("--sd", type=int, default=5, help="MFMAs between ds_write and its barrier")
ap.add_argument("--se", type=int, default=20, help="exposed part: ops between ds_write and its barrier")
ap.add_argument("--store2", default="nt")
ap.add_argument("--nb", type=int, default=4, help="loop count of the O loop")
ap.add_argument("--bat", default="1357", help="groups after which a batch barrier is placed")
ap.add_argument("--bq", type=int, default=0)
ap.add_argument("--xrot", type=int, default=0, help="X instr rotation by n-tile")
A = ap.parse_args()
DIAG = A.diag

NAME = "standalone__autoregressive_conv_wavernn__speech"
XBLK = 1040
XSLOT = 20480
WBASE = 2 * XSLOT
WSLOT = 40960
LDS_BYTES = WBASE + 3 * WSLOT

out = []
def e(s): out.append("    " + s)
def lab(s): out.append(s + ":")

header = f"""; x (2,4000,256) bf16 @0, w (5,256,512) bf16 @8, out (2,4000,256) bf16 @16, debug @24, ws @32
; @launch grid=(256,1,1) block=(512,1,1) lds={LDS_BYTES}
.amdgcn_target "amdgcn-amd-amdhsa--gfx950"
.text
.globl {NAME}_kernel
.p2align 8
.type {NAME}_kernel,@function
{NAME}_kernel:
"""
SX, SW, SO = 12, 16, 20
NST = 16
SC0, SR0 = 60, 76
def stamp_issue():
    if DIAG:
        e("s_memtime s[50:51]"); e("s_memrealtime s[52:53]")
def stamp_commit(idx=None):
    if DIAG:
        if idx is None:
            e(f"s_movreld_b32 s{SC0}, s50"); e(f"s_movreld_b32 s{SR0}, s52"); e("s_add_u32 m0, m0, 1")
        else:
            e(f"s_mov_b32 s{SC0+idx}, s50"); e(f"s_mov_b32 s{SR0+idx}, s52")
def stamp_now(idx):
    if DIAG:
        stamp_issue(); e("s_waitcnt lgkmcnt(0)"); stamp_commit(idx)

if DIAG:
    e("s_memtime s[54:55]"); e("s_memrealtime s[56:57]")
e(f"s_load_dwordx2 s[{SW}:{SW+1}], s[0:1], 8")
e(f"s_load_dwordx2 s[{SX}:{SX+1}], s[0:1], 0")
e("v_readfirstlane_b32 s3, v0")
e("s_lshr_b32 s28, s2, 8")
e("s_cbranch_scc1 L_end0")
if A.ntx: e("s_mov_b32 s48, s2"); e(f"s_xor_b32 s2, s2, {A.ntx}")
e("s_bitcmp1_b32 s3, 8")
e("s_cbranch_scc1 L_consumer")

sR, sT, sRX, sRW, sB, sMX, sS, sMW, sK, sO, sC = 20, 21, 22, 23, 24, 25, 26, 27, 28, 29, 30
sTau, sWS, sT1 = 31, 36, 37
RET, PC = 32, 34
VX, VW, VXT, VW2 = 3, 5, 7, 10
e("v_lshrrev_b32 v2, 3, v0")
e("v_lshrrev_b32 v4, 4, v0")
e(f"s_and_b32 s{sR}, s2, 3")
e(f"s_lshr_b32 s{sT}, s2, 5")
e("v_bfi_b32 v4, 6, v2, v4")
if A.wrot:
    e(f"s_mul_i32 s{sTau}, s{sT}, 5")
e(f"s_lshl3_add_u32 s{sT}, s{sR}, s{sT}")
e("v_xor_b32 v4, v4, v0")
e(f"s_mul_i32 s{sT}, s{sT}, 64000")
e("v_bfi_b32 v4, 14, v4, v0")
e(f"s_addk_i32 s{sT}, 0xf000")
e("v_and_b32 v6, 7, v4")
if A.rotl:
    lit = sum(int(ch) << (4*i) for i, ch in enumerate(A.rotl))
    e(f"s_lshl_b32 s{sR}, s2, 2"); e(f"s_lshr_b32 s{sR}, 0x{lit:x}, s{sR}"); e(f"s_and_b32 s{sR}, s{sR}, 3")
elif A.rot == 1: pass
elif A.rot == 3: e(f"s_min_u32 s{sR}, s{sR}, 2")
elif A.rot == 4: e(f"s_and_b32 s{sR}, s2, 1")
elif A.rot == 5: e(f"s_and_b32 s{sR}, s2, 2")
elif A.rot == 6: e(f"s_lshr_b32 s{sR}, s{sR}, 1")
elif A.rot == 7: e(f"s_andn2_b32 s{sR}, 1, s2")
elif A.rot == 0: e(f"s_mov_b32 s{sR}, 0")
e(f"s_lshl_b32 s{sRX}, s{sR}, 7")
e(f"s_lshl_b32 s{sRW}, s{sR}, 16")
e("v_lshrrev_b32 v7, 3, v4")
e(f"s_and_b32 s{sB}, s2, 24")
e(f"s_lshl4_add_u32 s{sRW}, s{sB}, s{sRW}")
CPF = list(map(int, A.cpf.split(':'))) if A.cpf else None
sP, sPX = 38, 39
if CPF and len(CPF) > 2:
    e(f"s_lshl_b32 s{sPX}, s{sB}, 11")
    e(f"s_add_u32 s{sPX}, s{sPX}, s{sT}")
e("v_lshlrev_b32 v7, 9, v7")
e(f"s_mov_b32 s{SX+2}, 2048000")
e("s_bitcmp1_b32 s2, 2")
e(f"s_cselect_b32 s{sB}, s{SX+2}, 0")
e(f"v_lshl_add_u32 v{VW}, v6, 4, v7")
e(f"s_lshl_b32 s{SX+3}, 1, 17")
e(f"s_lshl_b32 s{SW+3}, 1, 17")
e(f"s_lshl_b32 s{SW+2}, 5, 18")
e("v_and_b32 v1, 7, v0")
e(f"s_movk_i32 s{sK}, 16384")
e(f"s_lshl_b32 s{sWS}, 5, 13")
if CPF:
    e(f"s_lshr_b32 s{sP}, s2, 3")
    e("v_lshlrev_b32 v8, 7, v1")
    e(f"s_lshl1_add_u32 s{sP}, s{sP}, s3")
    e("v_and_b32 v9, 7, v2")
    e(f"s_add_u32 s{sP}, s{sP}, s{sRX}")
    if CPF[0]: e(f"s_add_u32 s{sP}, s{sP}, {64*CPF[0]}")
    e("v_lshl_add_u32 v8, v9, 18, v8")
    e(f"s_lshl_b32 s{sP}, s{sP}, 9")
    if A.rot == 1: e(f"s_bitset0_b32 s{sP}, 18")
    if len(CPF) > 2:
        e("v_and_b32 v9, 31, v0")
        e(f"v_lshl_add_u32 v9, v9, 9, s{sPX}")
        e("v_and_b32 v11, 32, v0")
        e("v_lshl_add_u32 v9, v11, 2, v9")
if 'P' in A.loader.split():
    e(f"s_lshr_b32 s{sP}, s2, 3")
    e("v_lshlrev_b32 v8, 7, v1")
    e(f"s_lshl1_add_u32 s{sP}, s{sP}, s{sRX}")
    e("v_lshl_add_u32 v8, v2, 18, v8")
    e(f"s_add_u32 s{sP}, s{sP}, 64")
    e(f"s_lshl_b32 s{sP}, s{sP}, 9")
e(f"v_lshl_add_u32 v1, v1, 4, s{sT}")
e(f"s_lshr_b32 s{sMX}, s3, 6")
if A.wrot:
    e(f"s_and_b32 s{sTau}, s{sTau}, -8")
    e(f"s_add_u32 s{sMW}, s{sMX}, s{sTau}")
    e(f"s_lshl_b32 s{sMW}, s{sMW}, 10")
    e(f"s_add_u32 s{sMW}, s{sMW}, s{sWS}")
    e(f"s_lshl_b32 s{sTau}, s{sTau}, 15")
else:
    e(f"s_lshl4_add_u32 s{sMW}, s3, s{sWS}")
e(f"s_mulk_i32 s{sMX}, {XBLK}")
e(f"v_lshl_add_u32 v{VX}, v2, 9, v1")
e(f"v_add_u32 v{VW2}, s{sK}, v{VW}")
ops = A.loader.split()
def emit_x():
    lab("L_x")
    if not A.xrot:
        e(f"s_mov_b32 m0, s{sMX}")
        e(f"v_mov_b32 v{VXT}, v{VX}")
        e(f"s_mov_b32 s{sC}, 3")
        lab("L_xl")
        e(f"buffer_load_dwordx4 v{VXT}, s[{SX}:{SX+3}], s{sRX} offen {A.xflag} lds")
        e(f"s_addk_i32 m0, {4*XBLK}")
        e(f"v_add_u32 v{VXT}, s{sK}, v{VXT}")
        e(f"s_sub_u32 s{sC}, s{sC}, 1")
        e("s_cbranch_scc0 L_xl")
    else:
        e(f"s_mov_b32 s{sC}, s{sNT}")
        lab("L_xl")
        e(f"s_mul_i32 s{sT1}, s{sC}, {4*XBLK}")
        e(f"v_lshl_add_u32 v{VXT}, s{sC}, 14, v{VX}")
        e(f"s_add_u32 m0, s{sT1}, s{sMX}")
        e(f"s_add_u32 s{sC}, s{sC}, 1")
        e(f"buffer_load_dwordx4 v{VXT}, s[{SX}:{SX+3}], s{sRX} offen {A.xflag} lds")
        e(f"s_and_b32 s{sC}, s{sC}, 3")
        e(f"s_cmp_lg_u32 s{sC}, s{sNT}")
        e("s_cbranch_scc1 L_xl")
        e(f"s_add_u32 m0, s{sMX}, {16*XBLK}")
        e(f"v_lshl_add_u32 v{VXT}, s{sK}, 2, v{VX}")
    e("s_bfm_b64 exec, 40, 0")
    e(f"buffer_load_dwordx4 v{VXT}, s[{SX}:{SX+3}], s{sRX} offen {A.xflag} lds")
    e("s_mov_b64 exec, -1")
    e(f"s_xor_b32 s{sMX}, s{sMX}, {XSLOT}")
    e(f"s_addk_i32 s{sRX}, 128")
    e(f"s_bitset0_b32 s{sRX}, 9")
    e(f"s_setpc_b64 s[{RET}:{RET+1}]")
def emit_w_ts(first):
    lab("L_w")
    e(f"s_mov_b32 m0, s{sMW}")
    if first: e("s_waitcnt lgkmcnt(0)")
    lab("L_wl")
    e(f"buffer_load_dwordx4 v{VW}, s[{SW}:{SW+3}], s{sO} offen {A.wflag} lds")
    e("s_addk_i32 m0, 4096")
    e(f"s_lshl4_add_u32 s{sT1}, s{sK}, s{sO}")
    e(f"buffer_load_dwordx4 v{VW2}, s[{SW}:{SW+3}], s{sO} offen {A.wflag} lds")
    e("s_addk_i32 m0, 4096")
    e(f"s_sub_u32 s{sO}, s{sT1}, s{SW+2}")
    e(f"s_cselect_b32 s{sO}, s{sT1}, s{sO}")
    e(f"s_cselect_b32 s{sT1}, 0, s{sWS}")
    e(f"s_sub_u32 m0, m0, s{sT1}")
    e(f"s_cmp_lg_u32 s{sO}, s{sS}")
    e("s_cbranch_scc1 L_wn")
    e(f"s_add_u32 m0, m0, s{sWS}")
    e(f"s_lshl1_add_u32 s{sRW}, s{sK}, s{sRW}")
    e(f"s_bitset0_b32 s{sRW}, 18")
    e(f"s_add_u32 s{sS}, s{sRW}, s{sTau}")
    e(f"s_mov_b32 s{sO}, s{sS}")
    lab("L_wn")
    e(f"s_sub_u32 s{sC}, s{sC}, 1")
    e("s_cbranch_scc0 L_wl")
    e(f"s_mov_b32 s{sMW}, m0")
    e(f"s_setpc_b64 s[{RET}:{RET+1}]")
sNT = 40
sSX = 41
if A.xrot: e(f"s_bfe_u32 s{sNT}, s2, 0x20003")
if A.ts:
    assert A.wrot
    e(f"s_add_u32 s{sS}, s{sRW}, s{sTau}")
    e(f"s_mov_b32 s{sO}, s{sS}")
    e(f"s_getpc_b64 s[{RET}:{RET+1}]")
    lab("L_pc2")
    e(f"s_add_u32 s{RET}, s{RET}, L_sched-L_pc2")
    e(f"s_addc_u32 s{RET+1}, s{RET+1}, 0")
    if ops[0][0] == 'w':
        e(f"s_mov_b32 s{sC}, {int(ops[0][1:] or 5)-1}")
        emit_w_ts(True); emit_x()
    else:
        e("s_waitcnt lgkmcnt(0)")
        e(f"s_add_u32 s{SX}, s{SX}, s{sB}")
        e(f"s_addc_u32 s{SX+1}, s{SX+1}, 0")
        emit_x(); emit_w_ts(False)
else:
    assert ops[0] == 'x'
    e(f"s_getpc_b64 s[{RET}:{RET+1}]")
    lab("L_pc2")
    e(f"s_add_u32 s{RET}, s{RET}, L_sched-L_pc2")
    e(f"s_addc_u32 s{RET+1}, s{RET+1}, 0")
    if A.pf1:
        if A.wrot: e(f"s_add_u32 s{sO}, s{sRW}, s{sTau}")
        e(f"s_lshl1_add_u32 s{sO}, s{sK}, s{sO if A.wrot else sRW}")
    e("s_waitcnt lgkmcnt(0)")
    if A.pf1:
        e(f"buffer_load_dword v8, v{VW}, s[{SW}:{SW+3}], s{sO} offen")
        e(f"buffer_load_dword v9, v{VW2}, s[{SW}:{SW+3}], s{sO} offen")
    e(f"s_add_u32 s{SX}, s{SX}, s{sB}")
    e(f"s_addc_u32 s{SX+1}, s{SX+1}, 0")
    if CPF:
        n = CPF[1]
        if n < 4:
            e(f"s_cmpk_ge_u32 s3, {64*n}")
            e("s_cbranch_scc1 L_pfx")
        e(f"buffer_load_dword v12, v8, s[{SW}:{SW+3}], s{sP} offen")
        if len(CPF) > 2:
            e("s_branch L_x")
            lab("L_pfx")
            if n < 3:
                e(f"s_cmpk_lt_u32 s3, 192")
                e("s_cbranch_scc1 L_x")
            if len(CPF) > 3 and CPF[3] == 1: e("s_bfm_b64 exec, 32, 0")
            e(f"buffer_load_dword v12, v9, s[{SX}:{SX+3}], s{sRX} offen offset:{128*CPF[2]} {A.xflag}")
            if len(CPF) > 3 and CPF[3] == 1: e("s_mov_b64 exec, -1")
        else:
            lab("L_pfx")
    emit_x()
    lab("L_w")
    e(f"s_mov_b32 m0, s{sMW}")
    if A.wrot:
        e(f"s_add_u32 s{sS}, s{sRW}, s{sTau}")
        e(f"s_mov_b32 s{sO}, s{sS}")
    else:
        e(f"s_mov_b32 s{sO}, s{sRW}")
    lab("L_wl")
    e(f"buffer_load_dwordx4 v{VW}, s[{SW}:{SW+3}], s{sO} offen {A.wflag} lds")
    e("s_addk_i32 m0, 4096")
    if not A.wrot:
        e("s_nop 0")
        e(f"buffer_load_dwordx4 v{VW2}, s[{SW}:{SW+3}], s{sO} offen {A.wflag} lds")
        e("s_addk_i32 m0, 4096")
        e(f"s_lshl4_add_u32 s{sO}, s{sK}, s{sO}")
        e(f"s_cmp_lt_u32 s{sO}, s{SW+2}")
        e("s_cbranch_scc1 L_wl")
    else:
        e(f"s_lshl4_add_u32 s{sT1}, s{sK}, s{sO}")
        e(f"buffer_load_dwordx4 v{VW2}, s[{SW}:{SW+3}], s{sO} offen {A.wflag} lds")
        e("s_addk_i32 m0, 4096")
        e(f"s_sub_u32 s{sO}, s{sT1}, s{SW+2}")
        e(f"s_cselect_b32 s{sO}, s{sT1}, s{sO}")
        e(f"s_cselect_b32 s{sT1}, 0, s{sWS}")
        e(f"s_sub_u32 m0, m0, s{sT1}")
        e(f"s_cmp_lg_u32 s{sO}, s{sS}")
        e("s_cbranch_scc1 L_wl")
    e(f"s_add_u32 s{sMW}, s{sMW}, s{sWS}")
    e(f"s_lshl1_add_u32 s{sRW}, s{sK}, s{sRW}")
    e(f"s_bitset0_b32 s{sRW}, 18")
    e(f"s_setpc_b64 s[{RET}:{RET+1}]")
lab("L_sched")
if A.ts and ops[0][0] == 'w':
    e(f"s_add_u32 s{SX}, s{SX}, s{sB}")
    e(f"s_addc_u32 s{SX+1}, s{SX+1}, 0")
used = {0, 12}
late = []
cur_out = out
def sched_ops(ops):
    for op in ops:
        k, a = op[0], op[1:]
        if k == 'x': e(f"s_call_b64 s[{RET}:{RET+1}], L_x")
        elif k == 'w':
            if A.ts: e(f"s_mov_b32 s{sC}, {int(a or 5)-1}")
            e(f"s_call_b64 s[{RET}:{RET+1}], L_w")
        elif k == 'r': e(f"s_sub_u32 s{sMW}, s{sMW}, {3*WSLOT}")
        elif k == 'b':
            e(f"s_waitcnt vmcnt({int(a)})"); e("s_barrier")
        elif k == 'B': e("s_barrier")
        elif k == 'P': e(f"buffer_load_dword v12, v8, s[{SW}:{SW+3}], s{sP} offen")
        elif k == 'C':
            sh = int(a or 7)
            e(f"s_getpc_b64 s[{PC}:{PC+1}]")
            lab("L_pcC")
            e(f"s_add_u32 s{PC}, s{PC}, L_tail-L_pcC")
            e(f"s_addc_u32 s{PC+1}, s{PC+1}, 0")
            e(f"v_lshlrev_b32 v13, {sh}, v0")
            e(f"v_min_u32 v13, L_end-L_tail, v13")
            e(f"global_load_dword v12, v13, s[{PC}:{PC+1}]")
        elif k == 'Z':
            e(f"s_and_b32 s{sSX}, s2, 24"); e(f"s_lshl_b32 s{sSX}, s{sSX}, 5"); e(f"s_add_u32 s{sSX}, s{sSX}, s3")
            e(f"s_mulk_i32 s{sSX}, 72"); e(f"s_add_u32 s{sSX}, s{sSX}, s{sT}"); e(f"s_max_i32 s{sSX}, s{sSX}, 0")
        elif k == 'S':
            e(f"s_add_u32 s{sT1}, s{sSX}, s{sRX}")
            for i in range(int(a[0]), int(a[1])): e(f"s_buffer_load_dwordx2 s[46:47], s[{SX}:{SX+3}], s{sT1} offset:{i*512+60}")
        elif k == 'y': e("s_load_dwordx2 s[8:9], s[0:1], 16")
        elif k == 'Y':
            e("v_lshrrev_b32 v14, 5, v0"); e("v_and_b32 v15, 3, v2"); e("v_lshl_add_u32 v15, v14, 4, v15")
            e("v_xor_b32 v14, v14, v0"); e("v_and_b32 v14, 7, v14"); e("v_lshlrev_b32 v14, 4, v14"); e("v_lshl_add_u32 v14, v15, 7, v14")
            e("v_and_b32 v16, 7, v0"); e("v_lshlrev_b32 v16, 4, v16"); e("v_lshl_add_u32 v15, v15, 9, v16")
            e("s_and_b32 s4, s2, 24"); e(f"s_lshl4_add_u32 s4, s4, s{sT}"); e("s_addk_i32 s4, 4096"); e("v_add_u32 v15, s4, v15")
            e(f"s_add_u32 s10, s{sT}, {4096+64000}"); e(f"s_mov_b32 s11, s{SX+3}"); e(f"s_mov_b32 s{sC}, {A.nb-1}")
            e("s_movk_i32 s5, 512"); e("s_movk_i32 s6, 2048")
            e("s_waitcnt lgkmcnt(0)"); e(f"s_add_u32 s8, s8, s{sB}"); e("s_addc_u32 s9, s9, 0")
        elif k == 'O':
            lab("L_o")
            e("s_barrier"); e("ds_read_b128 v[16:19], v14"); e("v_add_u32 v14, s5, v14"); e(f"s_sub_u32 s{sC}, s{sC}, 1"); e("s_waitcnt lgkmcnt(0)")
            e(f"buffer_store_dwordx4 v[16:19], v15, s[8:11], 0 offen {A.store}"); e("v_add_u32 v15, s6, v15"); e("s_cbranch_scc0 L_o")
        elif k == 'o':
            n = int(a or 1)
            e("s_barrier")
            for i in range(n): e(f"ds_read_b128 v[{16+4*i}:{19+4*i}], v14 offset:{512*i}")
            for i in range(n):
                e(f"s_waitcnt lgkmcnt({n-1-i})")
                e(f"buffer_store_dwordx4 v[{16+4*i}:{19+4*i}], v15, s[8:11], 0 offen offset:{2048*i} {A.store2}")
        elif k == 'q':
            for h in range(2):
                if h == 0: e("s_mov_b32 exec_lo, 0xffff"); e("s_mov_b32 exec_hi, exec_lo")
                else: e("s_not_b64 exec, exec")
                e("s_barrier"); e(f"ds_read_b128 v[16:19], v14"); e("s_waitcnt lgkmcnt(0)")
                e(f"buffer_store_dwordx4 v[16:19], v15, s[8:11], 0 offen {A.store}")
            if a == '1':
                e("s_mov_b64 exec, -1"); e("v_add_u32 v14, s5, v14"); e("v_add_u32 v15, s6, v15")
        elif k == 'k': e("s_waitcnt lgkmcnt(0)")
        elif k == 'v': e(f"s_waitcnt vmcnt({int(a)})")
        elif k == 's': stamp_now(int(a)); used.add(int(a))
        else: raise ValueError(op)
def sched_end():
    if DIAG: e("s_branch L_ldiag")
    else: e("s_endpgm")
if 'L' in ops:
    i = ops.index('L')
    sched_ops(ops[1:i]); e("s_branch L_late"); LATE = ops[i+1:]
else:
    sched_ops(ops[1:]); sched_end(); LATE = None
lab("L_end0")
e("s_endpgm")
lab("L_ldend")
def ldiag():
    lab("L_ldiag")
    e(f"s_mov_b32 s{SC0}, s54"); e(f"s_mov_b32 s{SR0}, s56")
    for i in range(NST):
        if i not in used: e(f"s_mov_b32 s{SC0+i}, 0"); e(f"s_mov_b32 s{SR0+i}, 0")
    e("s_branch L_diag")

out.append(".p2align 6")
lab("L_consumer")
S_T0, S_E0B, S_WAVE, S_BATCH = 24, 25, 26, 27
S_TMP = 28
S_IT = 36
S_DX, S_DW = 37, 38
S_C1, S_C2, S_MASK = 39, 40, 41
S_WP, S_WM2, S_WC = 42, 43, 44
XR = [0, 48]
WR = [96, 136]
ACC = 176
VXB, VWF, VWG, VO0, VO1, VO2 = 240, 241, 242, 243, 244, 245
TT, TU = 246, 250
S_WM, S_WN = S_TMP, S_TMP + 1
if not A.xst: e("s_load_dwordx2 s[8:9], s[0:1], 16")
if A.cpx or A.cpw:
    assert A.rot == 7
    e("s_and_b32 s24, s2, 3"); e("s_lshr_b32 s30, s2, 5"); e("s_lshl3_add_u32 s24, s24, s30"); e("s_mul_i32 s24, s24, 64000")
    e("s_and_b32 s25, s2, 24"); e("s_lshl_b32 s25, s25, 5"); e("s_add_u32 s25, s25, s3"); e("s_mulk_i32 s25, 72")
    e("s_add_u32 s25, s25, s24"); e(f"s_addk_i32 s25, {-(4096+18432) & 0xffff:#x}"); e("s_max_i32 s25, s25, 0")
    e("s_andn2_b32 s26, 1, s2"); e("s_lshl_b32 s27, s26, 7"); e("s_add_u32 s25, s25, s27")
    e(f"s_mov_b32 s{SX+2}, 2048000"); e("s_bitcmp1_b32 s2, 2"); e(f"s_cselect_b32 s28, s{SX+2}, 0"); e(f"s_lshl_b32 s{SX+3}, 1, 17")
    if A.cpw:
        ph, nw = map(int, A.cpw.split(':'))
        e("s_lshr_b32 s29, s2, 3"); e("s_lshl_b32 s29, s29, 8"); e("s_add_u32 s29, s29, s3"); e("s_addk_i32 s29, 0xff00")
        e("s_mul_i32 s29, s29, 20")
        e("s_lshr_b32 s30, s29, 15"); e("s_and_b32 s29, s29, 0x7fff"); e("s_lshl_b32 s30, s30, 18"); e("s_add_u32 s29, s29, s30")
        e("s_lshl_b32 s30, s26, 16"); e("s_add_u32 s29, s29, s30")
        e(f"s_lshl_b32 s{SW+3}, 1, 17"); e(f"s_lshl_b32 s{SW+2}, 5, 18")
    e("s_waitcnt lgkmcnt(0)")
    e(f"s_add_u32 s{SX}, s{SX}, s28"); e(f"s_addc_u32 s{SX+1}, s{SX+1}, 0")
    for i in range(A.cpx): e(f"s_buffer_load_dwordx2 s[46:47], s[{SX}:{SX+3}], s25 offset:{i*512+128+60}")
    if A.cpw:
        for i in range(nw): e(f"s_buffer_load_dwordx2 s[46:47], s[{SW}:{SW+3}], s29 offset:{ph*32768+i*128+60}")
if LATE is not None:
    e("s_branch L_cons2")
    lab("L_late")
    sched_ops(LATE); sched_end()
    lab("L_cons2")
if DIAG:
    for i in range(NST): e(f"s_mov_b32 s{SC0+i}, 0"); e(f"s_mov_b32 s{SR0+i}, 0")
e("v_and_b32 v0, 63, v0")
e(f"s_bfe_u32 s{S_WN}, s3, 0x20006")
if not A.xst:
    e(f"s_and_b32 s{S_T0}, s2, 3")
    e(f"s_lshr_b32 s{S_TMP+2}, s2, 5")
    e(f"s_lshl3_add_u32 s{S_T0}, s{S_T0}, s{S_TMP+2}")
    e(f"s_mul_i32 s{S_T0}, s{S_T0}, 125")
    e(f"s_and_b32 s{S_E0B}, s2, 24")
    e(f"s_lshl_b32 s{S_E0B}, s{S_E0B}, 4")
    e(f"s_mov_b32 s{SO+2}, 2048000")
    e("s_bitcmp1_b32 s2, 2")
    e(f"s_cselect_b32 s{S_BATCH}, s{SO+2}, 0")
    e(f"s_mov_b32 s{SO+3}, 0x20000")
e("v_and_b32 v2, 15, v0")
e("v_lshrrev_b32 v3, 4, v0")
e("v_lshrrev_b32 v4, 1, v2")
e("v_and_b32 v5, 1, v2")
e(f"v_mul_u32_u24 v6, {2*XBLK}, v4")
e("v_lshl_add_u32 v6, v5, 7, v6")
e(f"v_lshl_add_u32 v{VXB}, v3, 4, v6")
e("v_bfe_u32 v6, v0, 2, 2")
e("v_lshl_add_u32 v7, v3, 3, v6")
e("v_lshlrev_b32 v7, 8, v7")
e(f"v_xor_b32 v8, s{S_WN}, v6")
e("v_lshl_add_u32 v7, v8, 5, v7")
e("v_and_b32 v9, 1, v3")
e("v_lshl_add_u32 v7, v9, 7, v7")
e("v_and_b32 v8, 3, v0")
e("v_lshl_add_u32 v7, v8, 3, v7")
e(f"v_add_u32 v{VWF}, {WBASE}, v7")
e("v_xor_b32 v7, 0x80, v7")
e(f"v_add_u32 v{VWG}, {WBASE}, v7")
if A.xst:
    e("v_lshl_add_u32 v6, v4, 4, v5"); e("v_lshrrev_b32 v8, 1, v3"); e(f"v_lshl_add_u32 v8, s{S_WN}, 1, v8"); e("v_xor_b32 v8, v8, v4")
    e("v_lshlrev_b32 v8, 4, v8"); e("v_lshl_add_u32 v6, v6, 7, v8"); e(f"v_lshl_add_u32 v{VO0}, v9, 3, v6")
else:
    e("v_lshl_add_u32 v6, v4, 4, v5")
    e("v_lshl_add_u32 v6, v9, 1, v6")
    e("v_cmp_lt_u32 vcc, 0x70, v6")
    e(f"v_add_u32 v6, s{S_T0}, v6")
    e("v_lshlrev_b32 v6, 9, v6")
    e("v_lshrrev_b32 v8, 1, v3")
    e("v_lshl_add_u32 v6, v8, 4, v6")
    e(f"s_lshl_b32 s{S_TMP+3}, s{S_WN}, 5")
    e(f"s_add_u32 s{S_TMP+3}, s{S_TMP+3}, s{S_E0B}")
    e(f"v_add_u32 v{VO0}, s{S_TMP+3}, v6")
    e("v_bfrev_b32 v7, 1")
e(f"s_mov_b32 s{S_DX}, {XSLOT}")
e(f"s_mov_b32 s{S_WP}, {WSLOT}")
e(f"s_mov_b32 s{S_WM2}, {-2*WSLOT & 0xffffffff}")
e(f"s_mov_b32 s{S_WC}, 0")
if not A.xst: e(f"v_cndmask_b32 v{VO2}, v{VO0}, v7, vcc")
for r in range(0, 64, 2):
    e(f"v_mov_b64 v[{ACC+r}:{ACC+r+1}], 0")
e(f"s_mov_b32 s{S_C1}, 0x4038aa3b")
e(f"s_mov_b32 s{S_C2}, 0xbfb8aa3b")
e(f"s_mov_b32 s{S_MASK}, 0x7fffffff")
e(f"s_mov_b32 s{S_IT}, 0")
S_P1, S_P2, S_ONE = 30, 32, 34
for i, v in enumerate([f"s{S_C1}", f"s{S_C1}", f"s{S_C2}", f"s{S_C2}", "1.0", "1.0"]): e(f"s_mov_b32 s{30+i}, {v}")
if not (A.cpx or A.cpw) and (DIAG or not A.xst): e("s_waitcnt lgkmcnt(0)")
if DIAG:
    e(f"s_mov_b32 s{SC0}, s54"); e(f"s_mov_b32 s{SR0}, s56"); e("s_mov_b32 m0, 2")
if not A.xst:
    e(f"s_add_u32 s{SO}, s8, s{S_BATCH}")
    e(f"s_addc_u32 s{SO+1}, s9, 0")

def xreg(s, f): return XR[s] + 4*f
def wreg(s, t, c): return WR[s] + 8*t + 4*c
def areg(f, c): return ACC + 8*f + 4*c
def rd_x(s, f, ks):
    r = xreg(s, f)
    return (('x', f), f"ds_read_b128 v[{r}:{r+3}], v{VXB} offset:{(f>>2)*XBLK + (f&3)*256 + ks*64}")
def rd_w(s, t, c, u, wslot):
    r = wreg(s, t, c) + 2*u
    return (('w', t, c), f"ds_read_b64_tr_b16 v[{r}:{r+1}], v{VWG if c else VWF} offset:{t*8192 + u*1024}")
def mf(s, f, c, t):
    a = areg(f, c); w = wreg(s, t, c); x = xreg(s, f+t)
    return f"v_mfma_f32_16x16x32_bf16 v[{a}:{a+3}], v[{w}:{w+3}], v[{x}:{x+3}], v[{a}:{a+3}]"
def order(kind):
    if kind == 't': return [(f, c, t) for t in range(5) for c in range(2) for f in range(8)]
    if kind == 'a': return [(f, c, t) for f in range(8) for c in range(2) for t in range(5)]
    if kind == 'A': return [(f, c, t) for f in range(8) for t in range(5) for c in range(2)]
    raise ValueError(kind)
def reads_for(s, ks, wslot, seq):
    l = []; seen = set()
    for (f, c, t) in seq:
        if ('w', t, c) not in seen:
            seen.add(('w', t, c)); l += [rd_w(s, t, c, 0, wslot), rd_w(s, t, c, 1, wslot)]
        if ('x', f+t) not in seen:
            seen.add(('x', f+t)); l.append(rd_x(s, f+t, ks))
    assert len(l) == 32
    return l
def need_waits(seq, rd, upto):
    last = {}
    for i, (key, _) in enumerate(rd): last[key] = i
    w = {}; cur = 99
    for i, (f, c, t) in enumerate(seq[:upto]):
        n = len(rd) - 1 - max(last[('w', t, c)], last[('x', f+t)])
        n = min(n, 15)
        if n < cur: w[i] = n; cur = n
    return w
SEQ = order(A.order)
def step(cur, rd_cur, rd, pre=None):
    waits = need_waits(SEQ, rd_cur, A.bar)
    n = 80
    slots = {}
    span = A.rdend - A.bar + 1
    for k in range(32):
        g = A.bar + (k * span) // 32
        slots.setdefault(g, []).append(rd[k][1])
    for g in range(n):
        if g in waits: e(f"s_waitcnt lgkmcnt({waits[g]})")
        if g == A.bar - 10: stamp_issue()
        if g == A.bar:
            e("s_waitcnt lgkmcnt(0)")
            e("s_barrier")
            stamp_commit()
        f, c, t = SEQ[g]
        e(mf(cur, f, c, t))
        if pre and 12 <= g < 12 + len(pre): e(pre[g-12])
        for r in slots.get(g, []): e(r)

if DIAG and A.pre: stamp_now(13)
e("s_barrier")
stamp_now(1)
rdA = reads_for(0, 0, 0, SEQ)
rdB = reads_for(1, 1, 1, SEQ)
for r in rdA: e(r[1])
out.append(".p2align 6")
lab("L_loop")
WADV = [f"s_add_u32 s{S_WC}, s{S_WC}, 1", f"s_cmp_eq_u32 s{S_WC}, 3", f"s_cselect_b32 s{S_DW}, s{S_WM2}, s{S_WP}", f"s_cselect_b32 s{S_WC}, 0, s{S_WC}",
        f"v_add_u32 v{VWF}, s{S_DW}, v{VWF}", f"v_add_u32 v{VWG}, s{S_DW}, v{VWG}"]
step(0, rdA, rdB, pre=WADV)
step(1, rdB, rdA, pre=WADV + [f"v_add_u32 v{VXB}, s{S_DX}, v{VXB}", f"s_sub_u32 s{S_DX}, 0, s{S_DX}", f"s_add_u32 s{S_IT}, s{S_IT}, 1"])
e(f"s_cmp_lt_u32 s{S_IT}, 3")
e("s_cbranch_scc1 L_loop")

def store_ops(f, Q):
    l = []
    l.append(("s_nop 1", 8, ''))
    l.append((f"v_permlane16_swap_b32 v{Q}, v{Q+2}", 4, ''))
    l.append((f"v_permlane16_swap_b32 v{Q+1}, v{Q+3}", 4, ''))
    vo = [VO0, VO0, VO0, VO2][f >> 1]
    o = (f & ~1) * 1024
    if o < 4096: l.append((f"buffer_store_dwordx4 v[{Q}:{Q+3}], v{vo}, s[{SO}:{SO+3}], 0 offen offset:{o} {A.store}", 4, ''))
    else: l.append((f"buffer_store_dwordx4 v[{Q}:{Q+3}], v{vo}, s[{SO}:{SO+3}], s{S_IT} offen offset:{o-4096} {A.store}", 4, ''))
    return l
def epi10(f, pk=False):
    F = areg(f, 0); G = areg(f, 1)
    P = areg(f & ~1, 0) + 2*(f & 1)
    l = []
    if not pk:
        for r in range(4): l.append((f"v_mul_f32 v{TT+r}, s{S_C1}, v{F+r}", 4, 'F'))
        for r in range(4): l.append((f"v_mul_f32 v{G+r}, s{S_C2}, v{G+r}", 4, 'G'))
    else:
        for r in (0, 2): l.append((f"v_pk_mul_f32 v[{TT+r}:{TT+r+1}], v[{F+r}:{F+r+1}], s[{S_P1}:{S_P1+1}]", 4, 'F'))
        for r in (0, 2): l.append((f"v_pk_mul_f32 v[{G+r}:{G+r+1}], v[{G+r}:{G+r+1}], s[{S_P2}:{S_P2+1}]", 4, 'G'))
    for r in range(4): l.append((f"v_exp_f32 v{TT+r}, -abs(v{TT+r})", 8, ''))
    for r in range(4): l.append((f"v_exp_f32 v{G+r}, v{G+r}", 8, ''))
    if not pk:
        for r in range(4): l.append((f"v_add_f32 v{TU+r}, 1.0, v{TT+r}", 4, ''))
        for r in range(4): l.append((f"v_fma_f32 v{TU+r}, v{TU+r}, v{G+r}, v{TU+r}", 4, ''))
        for r in range(4): l.append((f"v_sub_f32 v{G+r}, 1.0, v{TT+r}", 4, ''))
    else:
        for r in (0, 2): l.append((f"v_pk_add_f32 v[{TU+r}:{TU+r+1}], v[{TT+r}:{TT+r+1}], s[{S_ONE}:{S_ONE+1}]", 4, ''))
        for r in (0, 2): l.append((f"v_pk_fma_f32 v[{TU+r}:{TU+r+1}], v[{TU+r}:{TU+r+1}], v[{G+r}:{G+r+1}], v[{TU+r}:{TU+r+1}]", 4, ''))
        for r in (0, 2): l.append((f"v_pk_add_f32 v[{G+r}:{G+r+1}], v[{TT+r}:{TT+r+1}], s[{S_ONE}:{S_ONE+1}] neg_lo:[1,0] neg_hi:[1,0]", 4, ''))
    for r in range(4): l.append((f"v_rcp_f32 v{TU+r}, v{TU+r}", 8, ''))
    for r in range(4): l.append((f"v_bfi_b32 v{G+r}, s{S_MASK}, v{G+r}, v{F+r}", 4, ''))
    if not pk:
        for r in range(4): l.append((f"v_mul_f32 v{G+r}, v{G+r}, v{TU+r}", 4, ''))
    else:
        for r in (0, 2): l.append((f"v_pk_mul_f32 v[{G+r}:{G+r+1}], v[{G+r}:{G+r+1}], v[{TU+r}:{TU+r+1}]", 4, ''))
    l.append((f"v_cvt_pk_bf16_f32 v{P}, v{G}, v{G+1}", 4, ''))
    l.append((f"v_cvt_pk_bf16_f32 v{P+1}, v{G+2}, v{G+3}", 4, ''))
    if f & 1: l += store_ops(f, areg(f & ~1, 0))
    return [(t, c_, k, f) for (t, c_, k) in l]
def epi9(f):
    F = areg(f, 0); G = areg(f, 1)
    T = TT + 4*(f & 1)
    P = areg(f & ~1, 0) + 2*(f & 1)
    if A.xst: P = F
    def grp(fmt, cost, k, pkfmt=None):
        return ('grp', [fmt(r) for r in range(4)], cost, k, [pkfmt(r) for r in (0, 2)] if pkfmt else None)
    def pr(b, r): return f"v[{b+r}:{b+r+1}]"
    gs = [
        grp(lambda r: f"v_mul_f32 v{T+r}, s{S_C1}, v{F+r}", 4, 'F', lambda r: f"v_pk_mul_f32 {pr(T,r)}, {pr(F,r)}, s[{S_P1}:{S_P1+1}]"),
        grp(lambda r: f"v_bfi_b32 v{F+r}, s{S_MASK}, 0.5, v{F+r}", 4, 'F'),
        grp(lambda r: f"v_exp_f32 v{T+r}, -abs(v{T+r})", 8, ''),
        grp(lambda r: f"v_fma_f32 v{F+r}, v{T+r}, v{F+r}, v{F+r}", 4, '', lambda r: f"v_pk_fma_f32 {pr(F,r)}, {pr(T,r)}, {pr(F,r)}, {pr(F,r)}"),
        grp(lambda r: f"v_mul_f32 v{G+r}, s{S_C2}, v{G+r}", 4, 'G', lambda r: f"v_pk_mul_f32 {pr(G,r)}, {pr(G,r)}, s[{S_P2}:{S_P2+1}]"),
        grp(lambda r: f"v_exp_f32 v{G+r}, v{G+r}", 8, ''),
        grp(lambda r: f"v_fma_f32 v{G+r}, v{F+r}, v{G+r}, v{F+r}", 4, '', lambda r: f"v_pk_fma_f32 {pr(G,r)}, {pr(F,r)}, {pr(G,r)}, {pr(F,r)}"),
        grp(lambda r: f"v_rcp_f32 v{G+r}, v{G+r}", 8, ''),
        grp(lambda r: f"v_fma_f32 v{G+r}, -abs(v{F+r}), v{G+r}, v{G+r}", 4, ''),
    ]
    l = []
    for gi, (_, txts, cost, k, pks) in enumerate(gs):
        for r, t in enumerate(txts):
            l.append((t, cost, k, f, (pks[r // 2] if pks and r % 2 == 0 else None)))
    l.append((f"v_cvt_pk_bf16_f32 v{P}, v{G}, v{G+1}", 4, '', f, None))
    l.append((f"v_cvt_pk_bf16_f32 v{P+1}, v{G+2}, v{G+3}", 4, '', f, None))
    if A.xst: l.append((f"ds_write_b64 v{VO0}, v[{P}:{P+1}] offset:{f*256}", 4, '', f, None))
    elif f & 1: l += [(t, c_, k, f, None) for (t, c_, k) in store_ops(f, areg(f & ~1, 0))]
    return l

L = A.lag
gl = [(f, 0) for f in range(L+1)]
for f in range(8):
    gl.append((f, 1))
    if f + L + 1 < 8: gl.append((f + L + 1, 0))
seqT = order('a' if A.tord == 'a' else 'A')
rd7 = reads_for(1, 1, 1, seqT)
last7 = {}
for i, (key, _) in enumerate(rd7): last7[key] = i
lab("L_tail")
stamp_issue()
e("s_waitcnt lgkmcnt(0)")
e(f"v_add_u32 v{VWF}, s{S_WP}, v{VWF}"); e(f"v_add_u32 v{VWG}, s{S_WP}, v{VWG}")
e("s_barrier")
stamp_commit()
if not A.xst: e(f"s_movk_i32 s{S_IT}, 4096")
ms = []
for (f, s) in gl:
    if A.tord == 'a':
        for c in range(2):
            for t in range(5): ms.append((s, f, c, t))
    else:
        for t in range(5):
            for c in range(2): ms.append((s, f, c, t))
issued = 0; done = -1
pend = []
wrote = {}
fin = set()
nxt = 0
syncs = []
def states_since(pos):
    n = 0
    for l in out[pos+1:]:
        m = re.match(r"\s*s_nop (\d+)", l)
        n += (int(m.group(1)) + 1) if m else 1
    return n
def emit_epi(op, txt=None):
    k, f = op[2], op[3]
    if k:
        d = states_since(wrote[(f, 0 if k == 'F' else 1)])
        if d < 8: e(f"s_nop {8-d-1}")
    tx = txt or op[0]
    if 's' in A.dbg and ('buffer_store' in tx or 'permlane' in tx): return
    if 'p' in A.dbg and ('permlane' in tx): return
    if 't' in A.dbg and ('v_exp' in tx or 'v_rcp' in tx): tx = "v_mov_b32 v254, v255"
    if 'n' in A.dbg and not ('v_exp' in tx or 'v_rcp' in tx): tx = "v_mov_b32 v254, v255"
    if 'm' in A.dbg: tx = "v_mov_b32 v254, v255"
    e(tx)
def ready(op):
    k, f = op[2], op[3]
    if not k: return True
    c = 0 if k == 'F' else 1
    return (f, c) in fin and states_since(wrote[(f, c)]) >= 8
def need_of(f, c, t): return max(last7[('w', t, c)], last7[('x', f+t)])
for g, (s, f, c, t) in enumerate(ms):
    if s == 1:
        need = need_of(f, c, t)
        assert need < issued, (g, need, issued)
        if need > done:
            la = need
            for (s2, f2, c2, t2) in ms[g+1:g+3]:
                if s2 == 1 and need_of(f2, c2, t2) < issued: la = max(la, need_of(f2, c2, t2))
            n = min(issued - 1 - la, 15)
            e(f"s_waitcnt lgkmcnt({n})"); done = issued - 1 - n
    e(mf(s, f, c, t))
    wrote[(f, c)] = len(out) - 1
    if s == 1 and t == 4: fin.add((f, c))
    k = 0
    while issued < 32 and k < (2 if issued < 25 else 1):
        e(rd7[issued][1]); issued += 1; k += 1
    quota = A.quota
    if syncs and g - syncs[0] >= A.sd:
        syncs.pop(0); e("s_waitcnt lgkmcnt(0)"); e("s_barrier"); quota = A.bq
    while quota > 0:
        if not pend:
            if nxt < 8 and (nxt, 0) in fin and (A.epi == 9 or (nxt, 1) in fin):
                pend = epi9(nxt) if A.epi == 9 else epi10(nxt); nxt += 1
            else: break
        if pend[0][1] > quota or not ready(pend[0]): break
        op = pend.pop(0); emit_epi(op); quota -= op[1]
        if op[0].startswith("ds_write") and str(op[3]) in A.bat: syncs.append(g)
stamp_issue()
if A.epi == 9:
    rest = list(pend)
    for ff in range(nxt, 8): rest += epi9(ff)
    i = 0
    syncs = [0 for _ in syncs]
    while i < len(rest):
        op = rest[i]
        if syncs and i - syncs[0] >= A.se:
            syncs.pop(0); e("s_waitcnt lgkmcnt(0)"); e("s_barrier")
        if A.pk and op[4]:
            emit_epi(op, op[4]); i += 2
        else:
            emit_epi(op); i += 1
        if op[0].startswith("ds_write") and str(op[3]) in A.bat: syncs.append(i)
    for _ in syncs:
        e("s_waitcnt lgkmcnt(0)"); e("s_barrier")
else:
    for op in pend: emit_epi(op)
    for ff in range(nxt, 8):
        for op in epi10(ff, A.pk): emit_epi(op)
if DIAG:
    e("s_waitcnt lgkmcnt(0)"); stamp_commit(10)
    stamp_now(11)
    e("s_waitcnt vmcnt(0)")
    lab("L_diag")
    e("s_load_dwordx2 s[58:59], s[0:1], 32")
    e("s_waitcnt vmcnt(0) lgkmcnt(0)")
    stamp_now(12)
    e("s_barrier")
    e(f"v_mbcnt_lo_u32_b32 v0, -1, 0")
    e(f"v_mbcnt_hi_u32_b32 v0, -1, v0")
    e("s_mov_b32 s52, s58"); e("s_mov_b32 s53, s59"); e("s_mov_b32 s54, 0x100000"); e("s_mov_b32 s55, 0x20000")
    e("v_mov_b32 v1, 0")
    vals = [f"s{SC0+i}" for i in range(NST)] + [f"s{SR0+i}" for i in range(NST)]
    for i, s in enumerate(vals):
        e(f"v_mov_b32 v2, {s}")
        e(f"v_cmp_eq_u32 vcc, {i}, v0")
        e("s_nop 1")
        e("v_cndmask_b32 v1, v1, v2, vcc")
    e("s_lshl_b32 s56, s%d, 3" % (48 if A.ntx else 2))
    e("s_lshr_b32 s49, s3, 6")
    e("s_add_u32 s56, s56, s49")
    e("s_lshl_b32 s56, s56, 7")
    e("v_lshlrev_b32 v3, 2, v0")
    e("v_cmp_gt_u32 vcc, 32, v0")
    e("s_and_saveexec_b64 s[4:5], vcc")
    e("buffer_store_dword v1, v3, s[52:55], s56 offen")
    e("s_waitcnt vmcnt(0)")
if A.dly:
    mk, n = map(int, A.dly.split(','))
    e("s_and_b32 s4, s2, 7"); e("s_lshl_b32 s4, 1, s4"); e(f"s_and_b32 s4, s4, {mk}"); e("s_cbranch_scc0 L_end")
    e(f"s_mov_b32 s4, {n}"); lab("L_dly"); e("s_sub_u32 s4, s4, 1"); e("s_cbranch_scc0 L_dly")
lab("L_end")
e("s_endpgm")
if DIAG: ldiag()
lab("L_cend")
if A.pad: out.append(f".fill {A.pad//4}, 4, 0xbf810000")

footer = f"""
.section .rodata,"a"
.p2align 6
.amdhsa_kernel {NAME}_kernel
  .amdhsa_next_free_vgpr 256
  .amdhsa_next_free_sgpr 96
  .amdhsa_accum_offset 256
  .amdhsa_group_segment_fixed_size 0
  .amdhsa_kernarg_size 40
  .amdhsa_user_sgpr_count 2
  .amdhsa_user_sgpr_kernarg_segment_ptr 1
  .amdhsa_system_sgpr_workgroup_id_x 1
.end_amdhsa_kernel
"""

def labels(text):
    import subprocess, tempfile, os
    d = tempfile.mkdtemp()
    open(d + "/a.s", "w").write(text)
    subprocess.check_call(["clang", "-x", "assembler", "-target", "amdgcn-amd-amdhsa", "-mcpu=gfx950", "-c", d + "/a.s", "-o", d + "/a.o"])
    o = subprocess.check_output(["llvm-objdump", "-t", d + "/a.o"], text=True)
    r = {}
    for l in o.splitlines():
        p = l.split()
        if len(p) >= 5 and p[-1].startswith("L_"): r[p[-1]] = int(p[0], 16)
    return r
text = header + "\n".join(out) + "\n" + footer
lb = labels(text)
sys.stderr.write("ldend %d consumer %d loop %d end %d\n" % (lb["L_ldend"], lb["L_consumer"], lb["L_loop"], lb["L_cend"]))
if A.cw:
    need = lb["L_pc"] + 255 * A.cw + 64 - lb["L_cend"]
    if need > 0: text = text.replace("L_cend:\n", "L_cend:\n.fill %d, 4, 0xbf810000\n" % ((need + 3) // 4))
    else: sys.stderr.write("WARNING: warm range ends %d bytes before the code end\n" % (-need))
sys.stdout.write(text)
```

```python
import sys, argparse, re

ap = argparse.ArgumentParser()
ap.add_argument("--diag", action="store_true")
ap.add_argument("--loader", default="w x w b10 x b5 w b0 r w x b5 w b0 w x b5 r w b0 w b0")
ap.add_argument("--store", default="nt", help="store cache flags")
ap.add_argument("--order", default="a", help="main-step MFMA order")
ap.add_argument("--bar", type=int, default=40, help="MFMA index of the mid-step barrier")
ap.add_argument("--rdend", type=int, default=74, help="last MFMA gap carrying a read")
ap.add_argument("--lag", type=int, default=1)
ap.add_argument("--xflag", default="nt", help="cache flags on X DMA")
ap.add_argument("--wflag", default="", help="cache flags on W DMA")
ap.add_argument("--pk", type=int, default=1)
ap.add_argument("--quota", type=int, default=8)
ap.add_argument("--pad", type=int, default=0)
ap.add_argument("--cw", type=int, default=0, help="code warm stride (bytes per lane, 0=off)")
ap.add_argument("--epi", type=int, default=9)
ap.add_argument("--tord", default="a", help="tail group order: a (chain) | t")
ap.add_argument("--dbg", default="", help="diagnostic tail edits: s=no store/permlane in gaps, t=trans->mov, w=waits right after MFMA")
ap.add_argument("--pfw", default="", help="p0:n vector L2 prefetch of W phases")
ap.add_argument("--pfx", default="", help="c0:n vector L2 prefetch of X blocks")
ap.add_argument("--pfpos", default="first", help="first | op P in loader")
ap.add_argument("--rot", type=int, default=1)
ap.add_argument("--ntx", type=int, default=0, help="xor wg id with this (diagnostic remap)")
ap.add_argument("--cpf", default="", help="p0:n[:c0[:nx]] cooperative prefetch: waves<n fetch W phase p0+w, wave 3 fetches X chunks c0..")
ap.add_argument("--ts", type=int, default=0, help="tap-stream W routine (ops wN = N taps)")
ap.add_argument("--pf1", type=int, default=0, help="prefetch own tap of W1 first")
ap.add_argument("--wrot", type=int, default=0, help="tap rotation by m-tile")
ap.add_argument("--dly", default="", help="DIAGNOSTIC mask,n : end delay loop for xcds in mask")
ap.add_argument("--rotl", default="", help="8 digits: rotation per wg&7")
ap.add_argument("--cpx", type=int, default=0, help="consumer scalar prefetch of X1: n loads per wave")
ap.add_argument("--cpw", default="", help="consumer scalar prefetch of W: phase:n loads per wave")
ap.add_argument("--cprog", default="", help="consumer scalar prefetch program: wN xN k B")
ap.add_argument("--wfix", type=int, default=0)
ap.add_argument("--wfree", type=int, default=0)
ap.add_argument("--p0", default="w00,x0,w01,x1,x2,w10,w11,x3,x4,w20,w21,x5,x6,w30,w31,x7,w40,w41,x8,x9,x10,x11")
ap.add_argument("--p0n", type=int, default=6, help="reads issued before the first MFMA")
ap.add_argument("--p0r", type=int, default=2, help="reads per gap in phase 0")
ap.add_argument("--p0bar", type=int, default=40)
ap.add_argument("--tseq", default="05 15 25 35 06 16 07 17 267 367 4* 5* 6* 7*")
ap.add_argument("--keep", type=int, default=10)
ap.add_argument("--b6", type=int, default=10)
ap.add_argument("--b7", type=int, default=44)
ap.add_argument("--trd", type=int, default=2)
ap.add_argument("--ahead", type=int, default=30)
ap.add_argument("--lead", type=int, default=6)
ap.add_argument("--tst", type=int, default=0)
ap.add_argument("--tst0", type=int, default=0)
ap.add_argument("--koff", type=int, default=-1, help="kernel offset inside its 4K page (multiple of 256)")
ap.add_argument("--cwarm", type=int, default=0)
ap.add_argument("--lal", type=int, default=6, help="loop alignment: 6 inline p2align, 0 none, -6 pad before the consumer")
ap.add_argument("--pads", type=int, default=0)
ap.add_argument("--padoff", type=int, default=0)
ap.add_argument("--lend", type=int, default=0, help="late loader code after the consumer code")
ap.add_argument("--nz", type=int, default=0, help="no accumulator zero-init")
ap.add_argument("--pre", type=int, default=0)
ap.add_argument("--xst", type=int, default=0, help="stores through LDS by the loader waves")
ap.add_argument("--sd", type=int, default=5, help="MFMAs between ds_write and its barrier")
ap.add_argument("--se", type=int, default=20, help="exposed part: ops between ds_write and its barrier")
ap.add_argument("--store2", default="nt")
ap.add_argument("--nb", type=int, default=4, help="loop count of the O loop")
ap.add_argument("--bat", default="1357", help="groups after which a batch barrier is placed")
ap.add_argument("--bq", type=int, default=0)
ap.add_argument("--tau0", type=int, default=0)
ap.add_argument("--pb", type=int, default=0, help="DIAG: extra stamped barriers before B0")
ap.add_argument("--xrot", type=int, default=0, help="X instr rotation by n-tile")
ap.add_argument("--sw", type=int, default=2, help="scalar prefetch width 1|2")
ap.add_argument("--x5", type=int, default=0, help="fifth X load only for wave 0")
ap.add_argument("--prio", type=int, default=0)
ap.add_argument("--skip0", type=int, default=0, help="tap 0 of W0 first (op F), rotation 1+(mt>>1) skipping it")
ap.add_argument("--plan", default="0:0@0 0:1@8 0:2@24 0:34@40 1:012@66 1:34@110 2:01234@142 3:01234@200 4:01234@280 5:01234@360")
ap.add_argument("--rlead", type=int, default=8, help="wanted gaps between a read and its first use")
ap.add_argument("--burst", type=int, default=6, help="reads issued at once when an MFMA finds its operands unissued")
ap.add_argument("--g0", default="w0,x0,w1,x1,x2,x3,x4,x5,x6,x7", help="read order of the first group")
ap.add_argument("--xearly", type=int, default=1)
ap.add_argument("--bst", type=int, default=0, help="DIAG barrier arrival stamps")
ap.add_argument("--nv", type=int, default=5, help="number of rotation variants (1 = tau 0 only, for tests)")
ap.add_argument("--vsz", type=int, default=4096, help="variant slot size")
ap.add_argument("--bskip", default="", help="DIAG: barrier numbers (1-based, comma) without stamps")
ap.add_argument("--mpad", default="0", help="pad visit offsets after L_merge (comma, bytes)")
ap.add_argument("--cw2", type=int, default=2, help="code warm loads per wave")
A = ap.parse_args()
if A.bst: A.tst = 1000; A.tst0 = 100000
A.epi = 8
if A.cprog: A.cpw = '1:10'
DIAG = A.diag

NAME = "standalone__autoregressive_conv_wavernn__speech"
XBLK = 1040
XSLOT = 20480
WBASE = 2 * XSLOT
WSLOT = 40960
LDS_BYTES = WBASE + 3 * WSLOT

ALIGN = "" if A.koff < 0 else ".p2align 12\n.fill %d, 4, 0xbf810000\n" % (((A.koff - 0x300) % 4096) // 4)
KOFF = 0xe00 if A.koff < 0 else A.koff
out = []
def e(s): out.append("    " + s)
def lab(s): out.append(s + ":")

header = f"""; x (2,4000,256) bf16 @0, w (5,256,512) bf16 @8, out (2,4000,256) bf16 @16, debug @24, ws @32
; @launch grid=(256,1,1) block=(512,1,1) lds={LDS_BYTES}
.amdgcn_target "amdgcn-amd-amdhsa--gfx950"
.text
{ALIGN}.globl {NAME}_kernel
.p2align 8
.type {NAME}_kernel,@function
{NAME}_kernel:
"""
SX, SW, SO = 12, 16, 20
NST = 16
SC0, SR0 = 60, 76
def stamp_issue():
    if DIAG and not A.tst:
        e("s_memtime s[50:51]"); e("s_memrealtime s[52:53]")
def stamp_commit(idx=None):
    if DIAG and (not A.tst or idx == 12):
        if idx is None:
            e(f"s_movreld_b32 s{SC0}, s50"); e(f"s_movreld_b32 s{SR0}, s52"); e("s_add_u32 m0, m0, 1")
        else:
            e(f"s_mov_b32 s{SC0+idx}, s50"); e(f"s_mov_b32 s{SR0+idx}, s52")
def stamp_now(idx):
    if DIAG and A.tst:
        if idx == 12: e("s_memtime s[50:51]"); e("s_memrealtime s[52:53]"); e("s_waitcnt lgkmcnt(0)"); stamp_commit(idx)
    elif DIAG:
        stamp_issue(); e("s_waitcnt lgkmcnt(0)"); stamp_commit(idx)

if DIAG:
    e("s_memtime s[54:55]"); e("s_memrealtime s[56:57]")
e(f"s_load_dwordx2 s[{SW}:{SW+1}], s[0:1], 8")
e(f"s_load_dwordx2 s[{SX}:{SX+1}], s[0:1], 0")
e("v_readfirstlane_b32 s3, v0")
e("s_lshr_b32 s28, s2, 8")
e("s_cbranch_scc1 L_end0")
if A.ntx: e("s_mov_b32 s48, s2"); e(f"s_xor_b32 s2, s2, {A.ntx}")
e("s_bitcmp1_b32 s3, 8")
e("s_cbranch_scc1 L_consumer")

sR, sT, sRX, sRW, sB, sMX, sS, sMW, sK, sO, sC = 20, 21, 22, 23, 24, 25, 26, 27, 28, 29, 30
sTau, sWS, sT1 = 31, 36, 37
RET, PC = 32, 34
VX, VW, VXT, VW2 = 3, 5, 7, 10
e("v_lshrrev_b32 v2, 3, v0")
e("v_lshrrev_b32 v4, 4, v0")
e(f"s_and_b32 s{sR}, s2, 3")
e(f"s_lshr_b32 s{sT}, s2, 5")
e("v_bfi_b32 v4, 6, v2, v4")
if A.wrot:
    if A.skip0: e(f"s_lshl2_add_u32 s{sTau}, s{sT}, 8")
    else: e(f"s_mul_i32 s{sTau}, s{sT}, {0 if A.tau0 else 5}")
e(f"s_lshl3_add_u32 s{sT}, s{sR}, s{sT}")
e("v_xor_b32 v4, v4, v0")
e(f"s_mul_i32 s{sT}, s{sT}, 64000")
e("v_bfi_b32 v4, 14, v4, v0")
e(f"s_addk_i32 s{sT}, 0xf000")
e("v_and_b32 v6, 7, v4")
if A.rotl:
    lit = sum(int(ch) << (4*i) for i, ch in enumerate(A.rotl))
    e(f"s_lshl_b32 s{sR}, s2, 2"); e(f"s_lshr_b32 s{sR}, 0x{lit:x}, s{sR}"); e(f"s_and_b32 s{sR}, s{sR}, 3")
elif A.rot == 1: pass
elif A.rot == 3: e(f"s_min_u32 s{sR}, s{sR}, 2")
elif A.rot == 4: e(f"s_and_b32 s{sR}, s2, 1")
elif A.rot == 5: e(f"s_and_b32 s{sR}, s2, 2")
elif A.rot == 6: e(f"s_lshr_b32 s{sR}, s{sR}, 1")
elif A.rot == 7: e(f"s_andn2_b32 s{sR}, 1, s2")
elif A.rot == 0: e(f"s_mov_b32 s{sR}, 0")
e(f"s_lshl_b32 s{sRX}, s{sR}, 7")
e(f"s_lshl_b32 s{sRW}, s{sR}, 16")
e("v_lshrrev_b32 v7, 3, v4")
e(f"s_and_b32 s{sB}, s2, 24")
e(f"s_lshl4_add_u32 s{sRW}, s{sB}, s{sRW}")
CPF = list(map(int, A.cpf.split(':'))) if A.cpf else None
sP, sPX = 38, 39
if CPF and len(CPF) > 2:
    e(f"s_lshl_b32 s{sPX}, s{sB}, 11")
    e(f"s_add_u32 s{sPX}, s{sPX}, s{sT}")
e("v_lshlrev_b32 v7, 9, v7")
e(f"s_mov_b32 s{SX+2}, 2048000")
e("s_bitcmp1_b32 s2, 2")
e(f"s_cselect_b32 s{sB}, s{SX+2}, 0")
e(f"v_lshl_add_u32 v{VW}, v6, 4, v7")
e(f"s_lshl_b32 s{SX+3}, 1, 17")
e(f"s_lshl_b32 s{SW+3}, 1, 17")
e(f"s_lshl_b32 s{SW+2}, 5, 18")
e("v_and_b32 v1, 7, v0")
e(f"s_movk_i32 s{sK}, 16384")
e(f"s_lshl_b32 s{sWS}, 5, 13")
if CPF:
    e(f"s_lshr_b32 s{sP}, s2, 3")
    e("v_lshlrev_b32 v8, 7, v1")
    e(f"s_lshl1_add_u32 s{sP}, s{sP}, s3")
    e("v_and_b32 v9, 7, v2")
    e(f"s_add_u32 s{sP}, s{sP}, s{sRX}")
    if CPF[0]: e(f"s_add_u32 s{sP}, s{sP}, {64*CPF[0]}")
    e("v_lshl_add_u32 v8, v9, 18, v8")
    e(f"s_lshl_b32 s{sP}, s{sP}, 9")
    if A.rot == 1: e(f"s_bitset0_b32 s{sP}, 18")
    if len(CPF) > 2:
        e("v_and_b32 v9, 31, v0")
        e(f"v_lshl_add_u32 v9, v9, 9, s{sPX}")
        e("v_and_b32 v11, 32, v0")
        e("v_lshl_add_u32 v9, v11, 2, v9")
PN = [o for o in A.loader.split() if o[0] == 'P']
if PN:
    e(f"s_lshr_b32 s{sP}, s2, 3")
    e("v_lshlrev_b32 v8, 7, v1")
    e(f"s_lshl1_add_u32 s{sP}, s{sP}, s{sRX}")
    e("v_lshl_add_u32 v8, v2, 18, v8")
    if PN[0] == 'P': e(f"s_add_u32 s{sP}, s{sP}, 64")
    e(f"s_lshl_b32 s{sP}, s{sP}, 9")
GN = [o for o in A.loader.split() if o[0] == 'G']
if GN:
    e(f"s_lshr_b32 s{sP}, s2, 3")
    e("v_add_u32 v9, 1, v2")
    e(f"s_lshl1_add_u32 s{sP}, s{sP}, s{sRX}")
    e("v_cmp_lt_u32 vcc, 4, v9")
    e("v_lshlrev_b32 v8, 7, v1")
    e(f"s_lshl_b32 s{sP}, s{sP}, 9")
    e("v_lshl_add_u32 v8, v9, 18, v8")
    e(f"v_subrev_u32 v9, {5*262144-32768}, v8")
    e("v_cndmask_b32 v8, v8, v9, vcc")
    if GN[0] == 'G8': e("v_lshrrev_b32 v9, 6, v0"); e("v_lshl_or_b32 v8, v9, 24, v8")
if any(o[0] == 'Q' for o in A.loader.split()):
    e("s_and_b32 s42, s2, 24"); e("s_lshl_b32 s42, s42, 5"); e("s_add_u32 s42, s42, s3"); e("s_mulk_i32 s42, 72"); e(f"s_add_u32 s42, s42, s{sT}")
    e("v_and_b32 v9, 63, v0"); e("v_lshl_add_u32 v9, v9, 9, s42")
e(f"v_lshl_add_u32 v1, v1, 4, s{sT}")
e(f"s_lshr_b32 s{sMX}, s3, 6")
if A.wrot:
    e(f"s_and_b32 s{sTau}, s{sTau}, -8")
    e(f"s_add_u32 s{sMW}, s{sMX}, s{sTau}")
    e(f"s_lshl_b32 s{sMW}, s{sMW}, 10")
    e(f"s_add_u32 s{sMW}, s{sMW}, s{sWS}")
    e(f"s_lshl_b32 s{sTau}, s{sTau}, 15")
else:
    e(f"s_lshl4_add_u32 s{sMW}, s3, s{sWS}")
e(f"s_mulk_i32 s{sMX}, {XBLK}")
e(f"v_lshl_add_u32 v{VX}, v2, 9, v1")
if A.x5:
    e("v_and_b32 v11, 24, v2"); e("v_lshlrev_b32 v11, 26, v11"); e(f"v_lshl_add_u32 v11, s{sK}, 2, v11"); e(f"v_add_u32 v11, v11, v{VX}")
e(f"v_add_u32 v{VW2}, s{sK}, v{VW}")
ops = A.loader.split()
def emit_x():
    lab("L_x")
    if not A.xrot:
        e(f"s_mov_b32 m0, s{sMX}")
        e(f"v_mov_b32 v{VXT}, v{VX}")
        e(f"s_mov_b32 s{sC}, 3")
        lab("L_xl")
        e(f"buffer_load_dwordx4 v{VXT}, s[{SX}:{SX+3}], s{sRX} offen {A.xflag} lds")
        e(f"s_addk_i32 m0, {4*XBLK}")
        e(f"v_add_u32 v{VXT}, s{sK}, v{VXT}")
        e(f"s_sub_u32 s{sC}, s{sC}, 1")
        e("s_cbranch_scc0 L_xl")
    else:
        e(f"s_mov_b32 s{sC}, s{sNT}")
        lab("L_xl")
        e(f"s_mul_i32 s{sT1}, s{sC}, {4*XBLK}")
        e(f"v_lshl_add_u32 v{VXT}, s{sC}, 14, v{VX}")
        e(f"s_add_u32 m0, s{sT1}, s{sMX}")
        e(f"s_add_u32 s{sC}, s{sC}, 1")
        e(f"buffer_load_dwordx4 v{VXT}, s[{SX}:{SX+3}], s{sRX} offen {A.xflag} lds")
        e(f"s_and_b32 s{sC}, s{sC}, 3")
        e(f"s_cmp_lg_u32 s{sC}, s{sNT}")
        e("s_cbranch_scc1 L_xl")
        e(f"s_add_u32 m0, s{sMX}, {16*XBLK}")
        e(f"v_lshl_add_u32 v{VXT}, s{sK}, 2, v{VX}")
    e("s_bfm_b64 exec, 40, 0")
    e(f"buffer_load_dwordx4 v{11 if A.x5 else VXT}, s[{SX}:{SX+3}], s{sRX} offen {A.xflag} lds")
    e("s_mov_b64 exec, -1")
    e(f"s_xor_b32 s{sMX}, s{sMX}, {XSLOT}")
    e(f"s_addk_i32 s{sRX}, 128")
    e(f"s_bitset0_b32 s{sRX}, 9")
    e(f"s_setpc_b64 s[{RET}:{RET+1}]")
def emit_w_ts(first):
    lab("L_w")
    e(f"s_mov_b32 m0, s{sMW}")
    if first: e("s_waitcnt lgkmcnt(0)")
    lab("L_wl")
    e(f"buffer_load_dwordx4 v{VW}, s[{SW}:{SW+3}], s{sO} offen {A.wflag} lds")
    e("s_addk_i32 m0, 4096")
    e(f"s_lshl4_add_u32 s{sT1}, s{sK}, s{sO}")
    e(f"buffer_load_dwordx4 v{VW2}, s[{SW}:{SW+3}], s{sO} offen {A.wflag} lds")
    e("s_addk_i32 m0, 4096")
    e(f"s_sub_u32 s{sO}, s{sT1}, s{SW+2}")
    e(f"s_cselect_b32 s{sO}, s{sT1}, s{sO}")
    e(f"s_cselect_b32 s{sT1}, 0, s{sWS}")
    e(f"s_sub_u32 m0, m0, s{sT1}")
    if A.skip0:
        e(f"s_cmp_lg_u32 s{sO}, s45"); e("s_cbranch_scc1 L_wk")
        e(f"s_lshl4_add_u32 s{sO}, s{sK}, s{sO}"); e("s_addk_i32 m0, 8192")
        lab("L_wk")
    e(f"s_cmp_lg_u32 s{sO}, s{sS}")
    e("s_cbranch_scc1 L_wn")
    e(f"s_add_u32 m0, m0, s{sWS}")
    e(f"s_lshl1_add_u32 s{sRW}, s{sK}, s{sRW}")
    e(f"s_bitset0_b32 s{sRW}, 18")
    e(f"s_add_u32 s{sS}, s{sRW}, s{sTau}")
    e(f"s_mov_b32 s{sO}, s{sS}")
    lab("L_wn")
    e(f"s_sub_u32 s{sC}, s{sC}, 1")
    e("s_cbranch_scc0 L_wl")
    e(f"s_mov_b32 s{sMW}, m0")
    e(f"s_setpc_b64 s[{RET}:{RET+1}]")
sNT = 40
sSX = 41
if A.xrot: e(f"s_bfe_u32 s{sNT}, s2, 0x20003")
if A.ts:
    assert A.wrot
    e(f"s_add_u32 s{sS}, s{sRW}, s{sTau}")
    e(f"s_mov_b32 s{sO}, s{sS}")
    e(f"s_getpc_b64 s[{RET}:{RET+1}]")
    lab("L_pc2")
    e(f"s_add_u32 s{RET}, s{RET}, L_sched-L_pc2")
    e(f"s_addc_u32 s{RET+1}, s{RET+1}, 0")
    if ops[0][0] == 'w':
        e(f"s_mov_b32 s{sC}, {int(ops[0][1:] or 5)-1}")
        emit_w_ts(True); emit_x()
    else:
        e("s_waitcnt lgkmcnt(0)")
        e(f"s_add_u32 s{SX}, s{SX}, s{sB}")
        e(f"s_addc_u32 s{SX+1}, s{SX+1}, 0")
        emit_x(); emit_w_ts(False)
else:
    assert ops[0] == 'x'
    e(f"s_getpc_b64 s[{RET}:{RET+1}]")
    lab("L_pc2")
    e(f"s_add_u32 s{RET}, s{RET}, L_sched-L_pc2")
    e(f"s_addc_u32 s{RET+1}, s{RET+1}, 0")
    if A.pf1:
        if A.wrot: e(f"s_add_u32 s{sO}, s{sRW}, s{sTau}")
        e(f"s_lshl1_add_u32 s{sO}, s{sK}, s{sO if A.wrot else sRW}")
    e("s_waitcnt lgkmcnt(0)")
    if A.pf1:
        e(f"buffer_load_dword v8, v{VW}, s[{SW}:{SW+3}], s{sO} offen")
        e(f"buffer_load_dword v9, v{VW2}, s[{SW}:{SW+3}], s{sO} offen")
    e(f"s_add_u32 s{SX}, s{SX}, s{sB}")
    e(f"s_addc_u32 s{SX+1}, s{SX+1}, 0")
    if CPF:
        n = CPF[1]
        if n < 4:
            e(f"s_cmpk_ge_u32 s3, {64*n}")
            e("s_cbranch_scc1 L_pfx")
        e(f"buffer_load_dword v12, v8, s[{SW}:{SW+3}], s{sP} offen")
        if len(CPF) > 2:
            e("s_branch L_x")
            lab("L_pfx")
            if n < 3:
                e(f"s_cmpk_lt_u32 s3, 192")
                e("s_cbranch_scc1 L_x")
            if len(CPF) > 3 and CPF[3] == 1: e("s_bfm_b64 exec, 32, 0")
            e(f"buffer_load_dword v12, v9, s[{SX}:{SX+3}], s{sRX} offen offset:{128*CPF[2]} {A.xflag}")
            if len(CPF) > 3 and CPF[3] == 1: e("s_mov_b64 exec, -1")
        else:
            lab("L_pfx")
    emit_x()
    lab("L_w")
    e(f"s_mov_b32 m0, s{sMW}")
    if A.wrot:
        e(f"s_add_u32 s{sS}, s{sRW}, s{sTau}")
        e(f"s_mov_b32 s{sO}, s{sS}")
    else:
        e(f"s_mov_b32 s{sO}, s{sRW}")
    lab("L_wl")
    e(f"buffer_load_dwordx4 v{VW}, s[{SW}:{SW+3}], s{sO} offen {A.wflag} lds")
    e("s_addk_i32 m0, 4096")
    if not A.wrot:
        e("s_nop 0")
        e(f"buffer_load_dwordx4 v{VW2}, s[{SW}:{SW+3}], s{sO} offen {A.wflag} lds")
        e("s_addk_i32 m0, 4096")
        e(f"s_lshl4_add_u32 s{sO}, s{sK}, s{sO}")
        e(f"s_cmp_lt_u32 s{sO}, s{SW+2}")
        e("s_cbranch_scc1 L_wl")
    else:
        e(f"s_lshl4_add_u32 s{sT1}, s{sK}, s{sO}")
        e(f"buffer_load_dwordx4 v{VW2}, s[{SW}:{SW+3}], s{sO} offen {A.wflag} lds")
        e("s_addk_i32 m0, 4096")
        e(f"s_sub_u32 s{sO}, s{sT1}, s{SW+2}")
        e(f"s_cselect_b32 s{sO}, s{sT1}, s{sO}")
        e(f"s_cselect_b32 s{sT1}, 0, s{sWS}")
        e(f"s_sub_u32 m0, m0, s{sT1}")
        e(f"s_cmp_lg_u32 s{sO}, s{sS}")
        e("s_cbranch_scc1 L_wl")
    e(f"s_add_u32 s{sMW}, s{sMW}, s{sWS}")
    e(f"s_lshl1_add_u32 s{sRW}, s{sK}, s{sRW}")
    e(f"s_bitset0_b32 s{sRW}, 18")
    e(f"s_setpc_b64 s[{RET}:{RET+1}]")
lab("L_sched")
if A.ts and ops[0][0] == 'w':
    e(f"s_add_u32 s{SX}, s{SX}, s{sB}")
    e(f"s_addc_u32 s{SX+1}, s{SX+1}, 0")
used = {0, 12}
tused = set()
late = []
cur_out = out
def sched_ops(ops):
    for op in ops:
        k, a = op[0], op[1:]
        if k == 'x': e(f"s_call_b64 s[{RET}:{RET+1}], L_x")
        elif k == 'w':
            if A.ts: e(f"s_mov_b32 s{sC}, {int(a or 5)-1}")
            e(f"s_call_b64 s[{RET}:{RET+1}], L_w")
        elif k == 'r': e(f"s_sub_u32 s{sMW}, s{sMW}, {3*WSLOT}")
        elif k == 'b':
            e(f"s_waitcnt vmcnt({int(a)})"); e("s_barrier")
        elif k == 'B': e("s_barrier")
        elif k == 'P':
            e(f"buffer_load_dword v12, v8, s[{SW}:{SW+3}], s{sP} offen")
            if a: e(f"s_lshl1_add_u32 s{sP}, s{sK}, s{sP}")
            if a == '2': e(f"s_bitset0_b32 s{sP}, 18")
        elif k == 'R':
            if A.skip0: e(f"s_lshr_b32 s{sT1}, s{sTau}, 5"); e(f"s_sub_u32 s{sMW}, s{sMW}, s{sT1}")
            e(f"s_lshr_b32 s{sTau}, s2, 5"); e(f"s_mul_i32 s{sTau}, s{sTau}, 5"); e(f"s_lshr_b32 s{sTau}, s{sTau}, 3")
            e(f"s_lshl_b32 s{sT1}, s{sTau}, 13"); e(f"s_add_u32 s{sMW}, s{sMW}, s{sT1}"); e(f"s_lshl_b32 s{sTau}, s{sTau}, 18")
            e(f"s_add_u32 s{sS}, s{sRW}, s{sTau}"); e(f"s_mov_b32 s{sO}, s{sS}")
        elif k == 'F':
            e(f"s_lshl4_add_u32 m0, s3, s{sWS}"); e(f"s_mov_b32 s45, s{sRW}")
            e(f"buffer_load_dwordx4 v{VW}, s[{SW}:{SW+3}], s{sRW} offen {A.wflag} lds")
            e("s_addk_i32 m0, 4096"); e("s_nop 0")
            e(f"buffer_load_dwordx4 v{VW2}, s[{SW}:{SW+3}], s{sRW} offen {A.wflag} lds")
        elif k == 'G':
            e(f"buffer_load_dword v12, v8, s[{SW}:{SW+3}], s{sP} offen")
        elif k == 'Q':
            e("s_bfm_b64 exec, 9, 0"); e(f"buffer_load_dword v12, v9, s[{SX}:{SX+3}], s{sRX} offen {A.xflag}"); e("s_mov_b64 exec, -1")
        elif k == 'C':
            sh = int(a or 7)
            e(f"s_getpc_b64 s[{PC}:{PC+1}]")
            lab("L_pcC")
            e(f"s_add_u32 s{PC}, s{PC}, L_tail-L_pcC")
            e(f"s_addc_u32 s{PC+1}, s{PC+1}, 0")
            e(f"v_lshlrev_b32 v13, {sh}, v0")
            e(f"v_min_u32 v13, L_end-L_tail, v13")
            e(f"global_load_dword v12, v13, s[{PC}:{PC+1}]")
        elif k == 'Z':
            e(f"s_and_b32 s{sSX}, s2, 24"); e(f"s_lshl_b32 s{sSX}, s{sSX}, 5"); e(f"s_add_u32 s{sSX}, s{sSX}, s3")
            e(f"s_mulk_i32 s{sSX}, 72"); e(f"s_add_u32 s{sSX}, s{sSX}, s{sT}"); e(f"s_max_i32 s{sSX}, s{sSX}, 0")
        elif k == 'S':
            e(f"s_add_u32 s{sT1}, s{sSX}, s{sRX}")
            for i in range(int(a[0]), int(a[1])):
                if A.sw == 1: e(f"s_buffer_load_dword s46, s[{SX}:{SX+3}], s{sT1} offset:{i*512}")
                else: e(f"s_buffer_load_dwordx2 s[46:47], s[{SX}:{SX+3}], s{sT1} offset:{i*512+60}")
        elif k == 'U':
            e("s_lshr_b32 s43, s2, 3"); e("s_lshl_b32 s43, s43, 8"); e("s_add_u32 s43, s43, s3"); e("s_andn2_b32 s44, 1, s2"); e("s_lshl_b32 s44, s44, 14")
            e("s_add_u32 s43, s43, s44"); e(f"s_add_u32 s43, s43, {int(a)*8192}"); e("s_lshl_b32 s43, s43, 2")
        elif k == 'V':
            for t in range(int(a[0]), int(a[1])):
                if t == 4: e("s_bitset1_b32 s43, 20")
                for h in range(2):
                    o = (t & 3) * 262144 + h * 128
                    if A.sw == 1: e(f"s_buffer_load_dword s46, s[{SW}:{SW+3}], s43 offset:{o}")
                    else: e(f"s_buffer_load_dwordx2 s[46:47], s[{SW}:{SW+3}], s43 offset:{o+60}")
                if t == 4: e("s_bitset0_b32 s43, 20")
        elif k == 'A':
            e(f"s_lshl1_add_u32 s43, s{sK}, s43"); e("s_bitset0_b32 s43, 18")
        elif k == 'y': e("s_load_dwordx2 s[8:9], s[0:1], 16")
        elif k == 'Y':
            e("v_lshrrev_b32 v14, 5, v0"); e("v_and_b32 v15, 3, v2"); e("v_lshl_add_u32 v15, v14, 4, v15")
            e("v_xor_b32 v14, v14, v0"); e("v_and_b32 v14, 7, v14"); e("v_lshlrev_b32 v14, 4, v14"); e("v_lshl_add_u32 v14, v15, 7, v14"); e(f"v_add_u32 v14, {WBASE+2*WSLOT}, v14")
            e("v_and_b32 v16, 7, v0"); e("v_lshlrev_b32 v16, 4, v16"); e("v_lshl_add_u32 v15, v15, 9, v16")
            e("s_and_b32 s4, s2, 24"); e(f"s_lshl4_add_u32 s4, s4, s{sT}"); e("s_addk_i32 s4, 4096"); e("v_add_u32 v15, s4, v15")
            e(f"s_add_u32 s10, s{sT}, {4096+64000}"); e(f"s_mov_b32 s11, s{SX+3}"); e(f"s_mov_b32 s{sC}, {A.nb-1}")
            e("s_movk_i32 s5, 512"); e("s_movk_i32 s6, 2048")
            e("s_waitcnt lgkmcnt(0)"); e(f"s_add_u32 s8, s8, s{sB}"); e("s_addc_u32 s9, s9, 0")
        elif k == 'O':
            lab("L_o")
            e("s_barrier"); e("ds_read_b128 v[16:19], v14"); e("v_add_u32 v14, s5, v14"); e(f"s_sub_u32 s{sC}, s{sC}, 1"); e("s_waitcnt lgkmcnt(0)")
            e(f"buffer_store_dwordx4 v[16:19], v15, s[8:11], 0 offen {A.store}"); e("v_add_u32 v15, s6, v15"); e("s_cbranch_scc0 L_o")
        elif k == 'o':
            n = int(a or 1)
            e("s_barrier")
            for i in range(n): e(f"ds_read_b128 v[{16+4*i}:{19+4*i}], v14 offset:{512*i}")
            for i in range(n):
                e(f"s_waitcnt lgkmcnt({n-1-i})")
                e(f"buffer_store_dwordx4 v[{16+4*i}:{19+4*i}], v15, s[8:11], 0 offen offset:{2048*i} {A.store2}")
        elif k == 'q':
            for h in range(2):
                if h == 0: e("s_mov_b32 exec_lo, 0xffff"); e("s_mov_b32 exec_hi, exec_lo")
                else: e("s_not_b64 exec, exec")
                e("s_barrier"); e(f"ds_read_b128 v[16:19], v14"); e("s_waitcnt lgkmcnt(0)")
                e(f"buffer_store_dwordx4 v[16:19], v15, s[8:11], 0 offen {A.store}")
            if a == '1':
                e("s_mov_b64 exec, -1"); e("v_add_u32 v14, s5, v14"); e("v_add_u32 v15, s6, v15")
        elif k == 'T':
            sh = int((a or '9').rstrip('ns')); fl = {'n': 'nt', 's': 'sc1'}.get(a[-1:], '')
            e(f"v_lshl_add_u32 v20, v0, {sh}, s4"); e(f"buffer_load_dword v21, v20, s[8:11], 0 offen {fl}")
        elif k == 't':
            if DIAG: e(f"s_memtime s[{60+2*int(a)}:{61+2*int(a)}]"); tused.add(int(a))
        elif k == 'k': e("s_waitcnt lgkmcnt(0)")
        elif k == 'v': e(f"s_waitcnt vmcnt({int(a)})")
        elif k == 's': stamp_now(int(a)); used.add(int(a))
        else: raise ValueError(op)
def sched_end():
    if DIAG: e("s_branch L_ldiag")
    else: e("s_endpgm")
if 'L' in ops:
    i = ops.index('L')
    sched_ops(ops[1:i]); e("s_branch L_late"); LATE = ops[i+1:]
else:
    sched_ops(ops[1:]); sched_end(); LATE = None
lab("L_end0")
e("s_endpgm")
lab("L_ldend")
def ldiag():
    lab("L_ldiag")
    if tused:
        e("s_waitcnt lgkmcnt(0)")
        for i in range(1, NST):
            if i in tused: e(f"s_mov_b32 s{SC0+i}, s{60+2*i}")
            else: e(f"s_mov_b32 s{SC0+i}, 0")
        for i in range(NST): e(f"s_mov_b32 s{SR0+i}, 0")
        e(f"s_mov_b32 s{SC0}, s54"); e(f"s_mov_b32 s{SR0}, s56")
        e("s_branch L_diag"); return
    e(f"s_mov_b32 s{SC0}, s54"); e(f"s_mov_b32 s{SR0}, s56")
    for i in range(NST):
        if i not in used: e(f"s_mov_b32 s{SC0+i}, 0"); e(f"s_mov_b32 s{SR0+i}, 0")
    e("s_branch L_diag")

if A.koff < 0: out.append(".p2align 6")
out.append("@CPAD")
lab("L_consumer")
S_T0, S_E0B, S_WAVE, S_BATCH = 24, 25, 26, 27
S_TMP = 28
S_IT = 36
S_DX, S_DW = 37, 38
S_C1, S_C2, S_MASK = 39, 40, 41
S_WP, S_WM2, S_WC = 42, 43, 44
XR = [0, 48]
WR = [96, 136]
ACC = 176
VXB, VWF, VWG, VO0, VO1, VO2 = 240, 241, 242, 243, 244, 245
TT, TU = 246, 250
S_WM, S_WN = S_TMP, S_TMP + 1
if A.cwarm:
    e("s_getpc_b64 s[34:35]")
    lab("L_pcw")
    e("s_lshr_b32 s24, s2, 3"); e("s_lshl_b32 s24, s24, 9"); e("s_lshl1_add_u32 s24, s3, s24")
    e(f"s_sub_u32 s34, s34, L_pcw-{NAME}_kernel"); e("s_subb_u32 s35, s35, 0")
    for i in range(A.cw2):
        if i: e("s_addk_i32 s24, 0x4000")
        if i == A.cw2 - 1: e(f"s_min_u32 s24, s24, (L_cend-{NAME}_kernel-68)&0xffffff80")
        e("s_load_dwordx2 s[46:47], s[34:35], s24 offset:60")
if not A.xst: e("s_load_dwordx2 s[8:9], s[0:1], 16")
if A.cpx or A.cpw:
    assert A.rot == 7
    e("s_and_b32 s24, s2, 3"); e("s_lshr_b32 s30, s2, 5"); e("s_lshl3_add_u32 s24, s24, s30"); e("s_mul_i32 s24, s24, 64000")
    e("s_and_b32 s25, s2, 24"); e("s_lshl_b32 s25, s25, 5"); e("s_add_u32 s25, s25, s3"); e("s_mulk_i32 s25, 72")
    e("s_add_u32 s25, s25, s24"); e(f"s_addk_i32 s25, {-(4096+18432) & 0xffff:#x}"); e("s_max_i32 s25, s25, 0")
    e("s_andn2_b32 s26, 1, s2"); e("s_lshl_b32 s27, s26, 7"); e("s_add_u32 s25, s25, s27")
    e(f"s_mov_b32 s{SX+2}, 2048000"); e("s_bitcmp1_b32 s2, 2"); e(f"s_cselect_b32 s28, s{SX+2}, 0"); e(f"s_lshl_b32 s{SX+3}, 1, 17")
    if A.cpw:
        ph, nw = map(int, A.cpw.split(':'))
        e("s_lshr_b32 s29, s2, 3"); e("s_lshl_b32 s29, s29, 8"); e("s_add_u32 s29, s29, s3"); e("s_addk_i32 s29, 0xff00")
        e("s_mul_i32 s29, s29, 20")
        e("s_lshr_b32 s30, s29, 15"); e("s_and_b32 s29, s29, 0x7fff"); e("s_lshl_b32 s30, s30, 18"); e("s_add_u32 s29, s29, s30")
        e("s_lshl_b32 s30, s26, 16"); e("s_add_u32 s29, s29, s30")
        e(f"s_lshl_b32 s{SW+3}, 1, 17"); e(f"s_lshl_b32 s{SW+2}, 5, 18")
    e("s_waitcnt lgkmcnt(0)")
    e(f"s_add_u32 s{SX}, s{SX}, s28"); e(f"s_addc_u32 s{SX+1}, s{SX+1}, 0")
    if A.cprog:
        for op in A.cprog.split():
            if op == 'k': e("s_waitcnt lgkmcnt(0)")
            elif op[0] == 'x':
                for i in range(9): e(f"s_buffer_load_dwordx2 s[46:47], s[{SX}:{SX+3}], s25 offset:{i*512+128*int(op[1:])+60}")
            elif op[0] == 'w':
                for i in range(10): e(f"s_buffer_load_dwordx2 s[46:47], s[{SW}:{SW+3}], s29 offset:{int(op[1:])*32768+i*128+60}")
            elif op[0] == 'B': e("s_barrier")
            elif op[0] == 'd': e(f"s_buffer_load_dword s46, s[{SX}:{SX+3}], s25 offset:{512*int(op[1:] or 0)}")
            elif op[0] == 'X':
                for i in range(int(op[1]), int(op[2])): e(f"s_buffer_load_dwordx2 s[46:47], s[{SX}:{SX+3}], s25 offset:{i*512+128+60}")
    else:
      for i in range(A.cpx): e(f"s_buffer_load_dwordx2 s[46:47], s[{SX}:{SX+3}], s25 offset:{i*512+128+60}")
      if A.cpw:
        for i in range(nw): e(f"s_buffer_load_dwordx2 s[46:47], s[{SW}:{SW+3}], s29 offset:{ph*32768+i*128+60}")
if LATE is not None and not A.lend:
    e("s_branch L_cons2")
    lab("L_late")
    sched_ops(LATE); sched_end()
    lab("L_cons2")
if DIAG:
    for i in range(NST): e(f"s_mov_b32 s{SC0+i}, 0"); e(f"s_mov_b32 s{SR0+i}, 0")
if A.prio: e(f"s_setprio {A.prio}")
e("v_and_b32 v0, 63, v0")
e(f"s_bfe_u32 s{S_WN}, s3, 0x20006")
if not A.xst:
    e(f"s_and_b32 s{S_T0}, s2, 3")
    e(f"s_lshr_b32 s{S_TMP+2}, s2, 5")
    e(f"s_lshl3_add_u32 s{S_T0}, s{S_T0}, s{S_TMP+2}")
    e(f"s_mul_i32 s{S_T0}, s{S_T0}, 125")
    e(f"s_and_b32 s{S_E0B}, s2, 24")
    e(f"s_lshl_b32 s{S_E0B}, s{S_E0B}, 4")
    e(f"s_mov_b32 s{SO+2}, 2048000")
    e("s_bitcmp1_b32 s2, 2")
    e(f"s_cselect_b32 s{S_BATCH}, s{SO+2}, 0")
    e(f"s_mov_b32 s{SO+3}, 0x20000")
e("v_and_b32 v2, 15, v0")
e("v_lshrrev_b32 v3, 4, v0")
e("v_lshrrev_b32 v4, 1, v2")
e("v_and_b32 v5, 1, v2")
e(f"v_mul_u32_u24 v6, {2*XBLK}, v4")
e("v_lshl_add_u32 v6, v5, 7, v6")
e(f"v_lshl_add_u32 v{VXB}, v3, 4, v6")
e("v_bfe_u32 v6, v0, 2, 2")
e("v_lshl_add_u32 v7, v3, 3, v6")
e("v_lshlrev_b32 v7, 8, v7")
e(f"v_xor_b32 v8, s{S_WN}, v6")
e("v_lshl_add_u32 v7, v8, 5, v7")
e("v_and_b32 v9, 1, v3")
e("v_lshl_add_u32 v7, v9, 7, v7")
e("v_and_b32 v8, 3, v0")
e("v_lshl_add_u32 v7, v8, 3, v7")
e(f"v_add_u32 v{VWF}, {WBASE}, v7")
e("v_xor_b32 v7, 0x80, v7")
e(f"v_add_u32 v{VWG}, {WBASE}, v7")
if A.xst:
    e("v_lshl_add_u32 v6, v4, 4, v5"); e("v_lshrrev_b32 v8, 1, v3"); e(f"v_lshl_add_u32 v8, s{S_WN}, 1, v8"); e("v_xor_b32 v8, v8, v4")
    e("v_lshlrev_b32 v8, 4, v8"); e("v_lshl_add_u32 v6, v6, 7, v8"); e(f"v_lshl_add_u32 v{VO0}, v9, 3, v6"); e(f"v_add_u32 v{VO0}, {WBASE+2*WSLOT}, v{VO0}")
else:
    e("v_lshl_add_u32 v6, v4, 4, v5")
    e("v_lshl_add_u32 v6, v9, 1, v6")
    e("v_cmp_lt_u32 vcc, 0x70, v6")
    e(f"v_add_u32 v6, s{S_T0}, v6")
    e("v_lshlrev_b32 v6, 9, v6")
    e("v_lshrrev_b32 v8, 1, v3")
    e("v_lshl_add_u32 v6, v8, 4, v6")
    e(f"s_lshl_b32 s{S_TMP+3}, s{S_WN}, 5")
    e(f"s_add_u32 s{S_TMP+3}, s{S_TMP+3}, s{S_E0B}")
    e(f"v_add_u32 v{VO0}, s{S_TMP+3}, v6")
    e("v_bfrev_b32 v7, 1")
e(f"s_mov_b32 s{S_WP}, {WSLOT}")
e(f"s_mov_b32 s{S_WM2}, {-2*WSLOT & 0xffffffff}")
if not A.xst: e(f"v_cndmask_b32 v{VO2}, v{VO0}, v7, vcc")
for r in range(0, 0 if A.nz else 64, 2):
    e(f"v_mov_b64 v[{ACC+r}:{ACC+r+1}], 0")
if A.epi == 8:
    e(f"s_mov_b32 s{S_C1}, 0xc038aa3b")
    e(f"s_mov_b32 s{S_MASK}, 0x4c000000")
    e("v_mov_b32 v244, 0xc1d00000")
    e("s_setreg_imm32_b32 hwreg(HW_REG_MODE, 8, 1), 0")
else:
    e(f"s_mov_b32 s{S_C1}, 0x4038aa3b")
    e(f"s_mov_b32 s{S_MASK}, 0x7fffffff")
e(f"s_mov_b32 s{S_C2}, 0xbfb8aa3b")
S_P1, S_P2, S_ONE = 30, 32, 34
for i, v in enumerate([f"s{S_C1}", f"s{S_C1}", f"s{S_C2}", f"s{S_C2}"] + ([f"s{S_MASK}"]*2 if A.epi == 8 else ["1.0", "1.0"])): e(f"s_mov_b32 s{30+i}, {v}")
if not (A.cpx or A.cpw) and (DIAG or not A.xst): e("s_waitcnt lgkmcnt(0)")
if DIAG:
    e(f"s_mov_b32 s{SC0}, s54"); e(f"s_mov_b32 s{SR0}, s56"); e("s_mov_b32 m0, 2")
if not A.xst:
    e(f"s_add_u32 s{SO}, s8, s{S_BATCH}")
    e(f"s_addc_u32 s{SO+1}, s9, 0")

def xreg(s, f): return XR[s] + 4*f
def wreg(s, t, c): return WR[s] + 8*t + 4*c
def areg(f, c): return ACC + 8*f + 4*c
def rd_x(s, f, ks):
    r = xreg(s, f)
    return (('x', f), f"ds_read_b128 v[{r}:{r+3}], v{VXB} offset:{(f>>2)*XBLK + (f&3)*256 + ks*64}")
def rd_w(s, t, c, u, wslot):
    r = wreg(s, t, c) + 2*u
    return (('w', t, c), f"ds_read_b64_tr_b16 v[{r}:{r+1}], v{VWG if c else VWF} offset:{t*8192 + u*1024}")
def mf(s, f, c, t):
    a = areg(f, c); w = wreg(s, t, c); x = xreg(s, f+t)
    return f"v_mfma_f32_16x16x32_bf16 v[{a}:{a+3}], v[{w}:{w+3}], v[{x}:{x+3}], v[{a}:{a+3}]"
def order(kind):
    if kind == 't': return [(f, c, t) for t in range(5) for c in range(2) for f in range(8)]
    if kind == 'a': return [(f, c, t) for f in range(8) for c in range(2) for t in range(5)]
    if kind == 'A': return [(f, c, t) for f in range(8) for t in range(5) for c in range(2)]
    if kind == 'x': return [(j - t, c, t) for j in range(12) for t in range(4, -1, -1) for c in range(2) if 0 <= j - t < 8]
    if kind == 'X': return [(j - t, c, t) for j in range(12) for c in range(2) for t in range(4, -1, -1) if 0 <= j - t < 8]
    if kind == 'u': return [(f, c, t) for t in range(5) for f in range(8) for c in range(2)]
    if kind == 'z': return [(f, c, (t if (2*f+c) % 2 == 0 else 4 - t)) for f in range(8) for c in range(2) for t in range(5)]
    raise ValueError(kind)
def reads_for(s, ks, wslot, seq):
    l = []; seen = set()
    for (f, c, t) in seq:
        if ('w', t, c) not in seen:
            seen.add(('w', t, c)); l += [rd_w(s, t, c, 0, wslot), rd_w(s, t, c, 1, wslot)]
        if ('x', f+t) not in seen:
            seen.add(('x', f+t)); l.append(rd_x(s, f+t, ks))
    assert len(l) == 32
    return l
def need_waits(seq, rd, upto):
    last = {}
    for i, (key, _) in enumerate(rd): last[key] = i
    w = {}; cur = 99
    for i, (f, c, t) in enumerate(seq[:upto]):
        n = len(rd) - 1 - max(last[('w', t, c)], last[('x', f+t)])
        n = min(n, 15)
        if n < cur: w[i] = n; cur = n
    return w
SEQ = order(A.order)
def step(cur, rd_cur, rd, pre=None):
    waits = need_waits(SEQ, rd_cur, A.bar)
    n = 80
    slots = {}
    span = A.rdend - A.bar + 1
    for k in range(32):
        g = A.bar + (k * span) // 32
        slots.setdefault(g, []).append(rd[k][1])
    for g in range(n):
        if g in waits: e(f"s_waitcnt lgkmcnt({waits[g]})")
        if g == A.bar - 10: stamp_issue()
        if g == A.bar:
            e("s_waitcnt lgkmcnt(0)")
            e("s_barrier")
            stamp_commit()
        f, c, t = SEQ[g]
        e(mf(cur, f, c, t))
        if pre and 12 <= g < 12 + len(pre): e(pre[g-12])
        for r in slots.get(g, []): e(r)


out.append("@PADVISIT")
class LQ:
    def __init__(s): s.ops = []; s.done = -1
    def issue(s, key, txt): s.ops.append(key); e(txt)
    def pos(s, key): return max(i for i, k in enumerate(s.ops) if k == key)
    def has(s, key): return key in s.ops
    def wait(s, p):
        if p <= s.done: return False
        n = len(s.ops) - 1 - p
        if n > 15: n = 15
        e(f"s_waitcnt lgkmcnt({n})"); s.done = len(s.ops) - 1 - n
        return True
    def drain(s): e("s_waitcnt lgkmcnt(0)"); s.done = len(s.ops) - 1
nbar = [0]
BSK = set(map(int, A.bskip.split(','))) if A.bskip else set()
def barrier():
    nbar[0] += 1
    if DIAG and A.bst and nbar[0] not in BSK:
        k = nbar[0] - len([b for b in BSK if b < nbar[0]])
        i = k + (1 if k >= 12 else 0)
        if i < 15: e(f"s_memtime s[{60+2*i}:{61+2*i}]")
    e("s_barrier")
RELQ = {}
nx = nw = nb = 0
for op in ops:
    k, a = op[0], op[1:]
    if k == 'x':
        if nx >= 2: RELQ[('x', nx - 2)] = nb - 1
        nx += 1
    elif k == 'w':
        for _ in range(int(a or 5)):
            if nw >= 15 and nw % 5 == 0: RELQ[('w', nw // 5 - 3)] = nb - 1
            nw += 1
    if k in 'bB': nb += 1
def unroll(tau):
    global out
    save = out
    nbar[0] = 0
    plan = []
    for tk in A.plan.split():
        m = re.match(r"(\d):(\w+)@(\d+)$", tk)
        plan.append((int(m.group(1)), [int(ch) if ch.isdigit() else (tau + ord(ch) - 97) % 5 for ch in m.group(2)], int(m.group(3))))
    mm = []
    gate = {}
    t0 = plan[0][1][0] if len(plan[0][1]) == 1 else 0
    g0 = []
    for tk in A.g0.split(','):
        g0.append(f"x{int(tk[1:]) + t0}" if tk[0] == 'x' else tk)
    for ei, (p, taps, gb) in enumerate(plan):
        for t in taps:
            for c in range(2): gate[('w', p, t, c)] = gb
        if p == 5: continue
        if ei == 0:
            have = set(); sq = []
            for tk in g0:
                have.add(tk)
                for f in range(8):
                    for c in range(2):
                        for t in taps:
                            if (0, f, c, t) not in sq and f"x{f+t}" in have and (f"w{c}" in have or f"w{t}{c}" in have): sq.append((0, f, c, t))
            assert len(sq) == 16 * len(taps), sq
            mm += sq
        else: mm += [(p, f, c, t) for f in range(8) for c in range(2) for t in taps]
    assert len(mm) == 400 and len(set(mm)) == 400
    firstbar = {}
    for (p, taps, gb) in plan: firstbar.setdefault(p, gb)
    fu = {}; lu = {}
    for g, (p, f, c, t) in enumerate(mm):
        for key in (('w', p, t, c), ('x', p, f+t)): fu.setdefault(key, g); lu[key] = g
    for i, (f, c, t) in enumerate(SEQ):
        fu.setdefault(('w', 5, t, c), 400 + i)
        if f + t < A.keep: fu.setdefault(('x', 5, f+t), 400 + i)
    for key in fu:
        p = key[1]
        prev = (key[0], p - 2) + key[2:]
        free = lu[prev] if p >= 2 else 0
        if key[0] == 'x':
            gx = firstbar[p] if (p % 2 == 0 or not A.xearly) else firstbar[p - 1]
            gate[key] = max(gx, free)
        else: gate[key] = max(gate[key], free)
    rds = []
    for key in sorted(fu, key=lambda k: (fu[k], k[0] == 'x')):
        rds += [key] * (2 if key[0] == 'w' else 1)
    o0 = []
    for tk in g0:
        if tk[0] == 'x': o0.append(('x', 0, int(tk[1:])))
        elif len(tk) == 2:
            for t in plan[0][1]: o0 += [('w', 0, t, int(tk[1]))] * 2
        else: o0 += [('w', 0, int(tk[1]), int(tk[2]))] * 2
    rds = o0 + [k for k in rds if k not in o0]
    q = LQ(); gotn = {}; wph = [0]; wleft = {p: 20 for p in range(6)}; adv = []; igap = {}
    def issue_read(key, g):
        p = key[1]
        if key[0] == 'w':
            assert p == wph[0] and not adv
            u = gotn.get(key, 0); r = wreg(p & 1, key[2], key[3]) + 2*u
            q.issue(key, f"ds_read_b64_tr_b16 v[{r}:{r+1}], v{VWG if key[3] else VWF} offset:{key[2]*8192 + u*1024}")
            gotn[key] = u + 1; wleft[p] -= 1
            if wleft[p] == 0 and p < 5:
                sd_ = S_WM2 if p % 3 == 2 else S_WP
                adv.extend([f"v_add_u32 v{VWF}, s{sd_}, v{VWF}", f"v_add_u32 v{VWG}, s{sd_}, v{VWG}"]); wph[0] += 1
        else:
            j = key[2]; r = xreg(p & 1, j)
            q.issue(key, f"ds_read_b128 v[{r}:{r+3}], v{VXB} offset:{(j>>2)*XBLK + (j&3)*256 + (p&1)*64 + ((p>>1)&1)*XSLOT}")
            gotn[key] = 1
        igap[key] = g
        rds.remove(key)
    def avail(g):
        l = []
        for k in rds:
            if gate[k] > g: continue
            if k[0] == 'w' and (k[1] != wph[0] or adv): continue
            l.append(k)
        return l
    bars = sorted(set(gb for (_, _, gb) in plan))
    needs = []; rel = {}
    for gb in bars:
        nd = set()
        for (p, taps, g_) in plan:
            if g_ == gb:
                nd |= {('w', p, (t - tau) % 5) for t in taps}
                if p % 2 == 0 and firstbar[p] == gb: nd.add(('x', p // 2))
        needs.append(nd)
    seen0 = set(); mlead = {}; G = []
    for g, (p, f, c, t) in enumerate(mm):
        out = []; G.append(out)
        if g in bars:
            bi = bars.index(g)
            lastp = -1
            for item, bq in RELQ.items():
                if bq != bi: continue
                sel = (lambda k: k[0] == 'w' and k[1] == item[1]) if item[0] == 'w' else (lambda k: k[0] == 'x' and k[1] // 2 == item[1])
                assert not any(sel(k) for k in rds), ("release", item, bi)
                ks = [k for k in fu if sel(k)]
                lastp = max([lastp] + [q.pos(k) for k in ks]); rel[item] = bi
                if max(q.pos(k) for k in ks) > q.done and max(igap[k] for k in ks) > g - 6: sys.stderr.write(f"tight release {item} at g={g}\n")
            if lastp >= 0: q.wait(lastp)
            barrier()
            if g == 0: stamp_now(1)
        kw, kx = ('w', p, t, c), ('x', p, f+t)
        if gotn.get(kw, 0) < 2 or gotn.get(kx, 0) < 1:
            while adv: e(adv.pop(0))
            n = 0
            while gotn.get(kw, 0) < 2 or gotn.get(kx, 0) < 1 or n < (A.p0n if g == 0 else A.burst):
                av = avail(g)
                if not av: break
                issue_read(av[0], g); n += 1
            assert gotn.get(kw, 0) == 2 and gotn.get(kx, 0) == 1, (g, kw, kx)
        need = max(q.pos(kw), q.pos(kx))
        q.wait(need)
        a_ = areg(f, c); w_ = wreg(p & 1, t, c); x_ = xreg(p & 1, f+t)
        src = f"v[{a_}:{a_+3}]"
        if A.nz and (f, c) not in seen0: src = "0"; seen0.add((f, c))
        e(f"v_mfma_f32_16x16x32_bf16 v[{a_}:{a_+3}], v[{w_}:{w_+3}], v[{x_}:{x_+3}], {src}")
        slots = 2
        if g + 1 in bars: slots = 0
        if adv and slots: e(adv.pop(0)); slots -= 1
        av = avail(g)
        urgent = any(g + 1 + k > min(fu[key], 400) - (A.rlead if fu[key] < 400 else 2) for k, key in enumerate(av))
        n = 0
        while av and n < slots and (n == 0 or urgent):
            mlead[av[0]] = fu[av[0]] - g
            issue_read(av[0], g); n += 1; av = avail(g)
    assert not rds and not adv, rds
    sys.stderr.write(f"tau {tau} short leads: " + " ".join(f"{''.join(map(str, k))}:{v}" for k, v in mlead.items() if v < A.rlead) + "\n")
    out = save
    return G, q, needs, rel, bars
VR = [unroll(tau) for tau in range(A.nv)]
gm = 400
while gm > 0 and all(v[0][gm-1] == VR[0][0][gm-1] for v in VR): gm -= 1
q = VR[0][1]
assert all(len(v[1].ops) == len(q.ops) and v[1].done == q.done and v[1].ops[q.done+1:] == q.ops[q.done+1:] for v in VR)
assert gm == 0 or any(l.strip().startswith("s_waitcnt lgkmcnt") for g in range(gm, 400) for l in VR[0][0][g])
NEEDS = [set().union(*[v[2][i] for v in VR]) for i in range(len(VR[0][2]))]
REL = {k: max(v[3].get(k, 99) for v in VR) for k in [('w', p) for p in range(5)] + [('x', 0), ('x', 1)]}
nb0 = len(NEEDS)
NEEDS += [{('w', 6, k) for k in range(5)} | {('x', 3)}, {('w', 7, k) for k in range(5)}]
for k in REL:
    if REL[k] == 99: REL[k] = nb0
sys.stderr.write(f"merge gap {gm}; bars {VR[0][4]}; release " + " ".join(f"{k[0]}{k[1]}@B{v}" for k, v in REL.items()) + "\n")
def check_loader():
    seq = []; nx = 0; nw = 0; nb = 0; done = 0; rs = []
    for op in ops:
        k, a = op[0], op[1:]
        if k == 'x':
            if nx >= 2: assert REL[('x', nx - 2)] < nb, (op, nx, nb)
            seq += [('x', nx)] * 5; nx += 1
        elif k == 'w':
            for _ in range(int(a or 5)):
                p, kk = divmod(nw, 5)
                if p >= 3: assert REL[('w', p - 3)] < nb, ("W slot", p, kk, nb)
                assert len(rs) == p // 3, ("ring", p, kk)
                seq += [('w', p, kk)] * 2; nw += 1
        elif k == 'r': assert nw % 15 == 0; rs.append(nw)
        elif k in 'PGQ': seq.append(('p',))
        elif k in 'vb': done = max(done, len(seq) - int(a))
        elif k in 'FR': raise ValueError(op)
        if k in 'bB':
            if nb < len(NEEDS):
                fin = set(seq[:done]) - set(seq[done:])
                assert NEEDS[nb] <= fin, ("needs", nb, NEEDS[nb] - fin)
            nb += 1
    assert nx == 4 and nw == 40 and nb == len(NEEDS), (nx, nw, nb, len(NEEDS))
check_loader()
if gm > 0:
    e("s_getpc_b64 s[4:5]")
    lab("L_pcv")
    e("s_lshr_b32 s24, s2, 5"); e("s_mul_i32 s24, s24, 5"); e("s_lshr_b32 s24, s24, 3"); e(f"s_mul_i32 s24, s24, {A.vsz}")
    e("s_add_u32 s24, s24, L_v0-L_pcv"); e("s_add_u32 s4, s4, s24"); e("s_addc_u32 s5, s5, 0"); e("s_setpc_b64 s[4:5]")
    for tau, v in enumerate(VR):
        out.append(f"@VPAD{tau}")
        lab(f"L_v{tau}")
        for g in range(gm): out.extend(v[0][g])
        if tau < A.nv - 1: e("s_branch L_merge")
lab("L_loop"); lab("L_merge")
for g in range(gm, 400): out.extend(VR[0][0][g])

VK = 244
def epi8(f):
    F = areg(f, 0); G = areg(f, 1); P = F
    def pr(b, r): return f"v[{b+r}:{b+r+1}]"
    gs = [
        ([f"v_fma_f32 v{F+r}, s{S_C1}, v{F+r}, v{VK}" for r in range(4)], 4, 'F', [f"v_pk_fma_f32 {pr(F,r)}, {pr(F,r)}, s[{S_P1}:{S_P1+1}], v[{VK}:{VK+1}] op_sel_hi:[1,1,0]" for r in (0, 2)]),
        ([f"v_exp_f32 v{F+r}, v{F+r} clamp" for r in range(4)], 8, '', None),
        ([f"v_fma_f32 v{F+r}, v{F+r}, s{S_MASK}, 0.5" for r in range(4)], 4, '', [f"v_pk_fma_f32 {pr(F,r)}, {pr(F,r)}, s[{S_ONE}:{S_ONE+1}], 0.5 op_sel_hi:[1,1,0]" for r in (0, 2)]),
        ([f"v_mul_f32 v{G+r}, s{S_C2}, v{G+r}" for r in range(4)], 4, 'G', [f"v_pk_mul_f32 {pr(G,r)}, {pr(G,r)}, s[{S_P2}:{S_P2+1}]" for r in (0, 2)]),
        ([f"v_exp_f32 v{G+r}, v{G+r}" for r in range(4)], 8, '', None),
        ([f"v_fma_f32 v{G+r}, v{F+r}, v{G+r}, v{F+r}" for r in range(4)], 4, '', [f"v_pk_fma_f32 {pr(G,r)}, {pr(F,r)}, {pr(G,r)}, {pr(F,r)}" for r in (0, 2)]),
        ([f"v_rcp_f32 v{G+r}, v{G+r}" for r in range(4)], 8, '', None),
        ([f"v_fma_f32 v{G+r}, -v{F+r}, v{G+r}, v{G+r}" for r in range(4)], 4, '', [f"v_pk_fma_f32 {pr(G,r)}, {pr(F,r)}, {pr(G,r)}, {pr(G,r)} neg_lo:[1,0,0] neg_hi:[1,0,0]" for r in (0, 2)]),
    ]
    l = []
    for (txts, cost, k, pks) in gs:
        for r, t in enumerate(txts):
            l.append((t, cost, k, f, (pks[r // 2] if pks and r % 2 == 0 else None)))
    l.append((f"v_cvt_pk_bf16_f32 v{P}, v{G}, v{G+1}", 4, '', f, None))
    l.append((f"v_cvt_pk_bf16_f32 v{P+1}, v{G+2}, v{G+3}", 4, '', f, None))
    l.append((f"ds_write_b64 v{VO0}, v[{P}:{P+1}] offset:{f*256}", 0 if A.wfree else 4, '', f, None))
    return l

ms = []
for tk in A.tseq.split():
    f = int(tk[0])
    if tk[1:] == '*': ph = [5, 6, 7]
    else: ph = [int(ch) for ch in tk[1:]]
    for c in range(2):
        for p in ph:
            for t in range(5): ms.append((p, f, c, t))
assert sorted(ms) == sorted((p, f, c, t) for p in (5, 6, 7) for f in range(8) for c in range(2) for t in range(5))
NM = len(ms)
WB = {5: WR[1], 6: WR[0], 7: 0}
def twreg(p, t, c): return WB[p] + 8*t + 4*c
first = {}; last = {}; lastacc = {}
for g, (p, f, c, t) in enumerate(ms):
    for key in (('w', p, t, c), ('x', p, f+t)):
        first.setdefault(key, g); last[key] = g
    lastacc[(f, c)] = g
loc = {('x', 5, j): xreg(1, j) for j in range(A.keep)}
pool = [40, 44, 248, 252] + [xreg(1, j) for j in range(A.keep, 12)]
todo = sorted([k for k in first if not (k[1] == 5 and (k[0] == 'w' or k[2] < A.keep))], key=lambda k: (first[k], k[0] == 'x'))
nrd = {k: (2 if k[0] == 'w' else 1) for k in first}
got = {k: nrd[k] for k in first if k not in todo}
lab("L_tail")
wrote = {}; fin = set(); pend = []; nxt = 0; syncs = []
def states_since(pos):
    n = 0
    for l in out[pos+1:]:
        m = re.match(r"\s*s_nop (\d+)", l)
        n += (int(m.group(1)) + 1) if m else 1
    return n
def emit_epi(op, txt=None):
    k, f = op[2], op[3]
    if k:
        d = states_since(wrote[(f, 0 if k == 'F' else 1)])
        if d < 8: e(f"s_nop {8-d-1}")
    tx = txt or op[0]
    if tx.startswith("ds_write"):
        q.issue(('st', f), tx); pool.extend([areg(f, 1), areg(f, 0)])
    else: e(tx)
def ready(op):
    k, f = op[2], op[3]
    if not k: return True
    c = 0 if k == 'F' else 1
    return (f, c) in fin and states_since(wrote[(f, c)]) >= 8
misc = [f"v_add_u32 v{VWF}, s{S_WM2}, v{VWF}", f"v_add_u32 v{VWG}, s{S_WM2}, v{VWG}"]
w6left = 20; adv7 = False
minlead = 99; issued_at = {}; ntst = 0
for g, (p, f, c, t) in enumerate(ms):
    if g in (A.b6 - 10, A.b7 - 10) : stamp_issue()
    if g in (A.b6, A.b7):
        if A.b6 < 10 and g == A.b6: stamp_issue()
        if g == A.b6 or (DIAG and not A.tst): q.drain()
        barrier(); stamp_commit()
    if A.tst and g >= A.tst0 and (g - A.tst0) % A.tst == 0 and ntst < 10:
        ntst += 1; e(f"s_memtime s[{60+2*ntst}:{61+2*ntst}]")
    kw, kx = ('w', p, t, c), ('x', p, f+t)
    assert got.get(kw, 0) == 2 and got.get(kx, 0) == 1, (g, kw, kx)
    need = max(q.pos(kw), q.pos(kx))
    if need > q.done:
        for (p2, f2, c2, t2) in ms[g+1:g+3]:
            k2w, k2x = ('w', p2, t2, c2), ('x', p2, f2+t2)
            if got.get(k2w, 0) == 2 and got.get(k2x, 0) == 1 and issued_at.get(k2w, -99) <= g - A.lead and issued_at.get(k2x, -99) <= g - A.lead: need = max(need, q.pos(k2w), q.pos(k2x))
        q.wait(need)
    a = areg(f, c); w = twreg(p, t, c); x = loc[kx]
    e(f"v_mfma_f32_16x16x32_bf16 v[{a}:{a+3}], v[{w}:{w+3}], v[{x}:{x+3}], v[{a}:{a+3}]")
    wrote[(f, c)] = len(out) - 1

    if lastacc[(f, c)] == g: fin.add((f, c))
    if last[kx] == g: pool.append(loc[kx])
    quota = A.quota
    if misc and (not adv7 or w6left == 0):
        e(misc.pop(0)); quota -= 4
    n = 0
    while todo and n < A.trd:
        key = todo[0]
        if key[1] >= 6 and g < A.b6: break
        if key[0] == 'w':
            if misc and (key[1] == 7 or not adv7): break
            if key[1] == 7 and (g < A.b7 or not adv7):
                alt = [k for k in todo if k[0] == 'x' or k[1] == 6]
                if not alt or first[alt[0]] - g > A.ahead: break
                key = alt[0]
        if key[0] == 'w':
            u = got.get(key, 0); r = twreg(key[1], key[2], key[3]) + 2*u
            q.issue(key, f"ds_read_b64_tr_b16 v[{r}:{r+1}], v{VWG if key[3] else VWF} offset:{key[2]*8192 + u*1024}")
            got[key] = u + 1
            if key[1] == 6:
                w6left -= 1
                if w6left == 0:
                    misc = [f"v_add_u32 v{VWF}, s{S_WP}, v{VWF}", f"v_add_u32 v{VWG}, s{S_WP}, v{VWG}"]; adv7 = True
            if got[key] == 2: todo.remove(key); issued_at[key] = g; minlead = min(minlead, first[key] - g)
        else:
            if not pool or first[key] - g > A.ahead: break
            r = pool.pop(0); loc[key] = r; j = key[2]
            off = (j >> 2)*XBLK + (j & 3)*256 + (0 if key[1] == 6 else 64) + (0 if key[1] == 5 else XSLOT)
            q.issue(key, f"ds_read_b128 v[{r}:{r+3}], v{VXB} offset:{off}")
            got[key] = 1; todo.remove(key); issued_at[key] = g; minlead = min(minlead, first[key] - g)
            if first[key] - g < 6: sys.stderr.write(f"short lead {key} at {g}: {first[key]-g}\n")
        n += 1
    if syncs and g - syncs[0] >= A.sd:
        syncs.pop(0); q.drain(); e("s_barrier"); quota = A.bq
    while quota > 0 or (pend and pend[0][1] == 0):
        if not pend:
            if nxt < 8 and (nxt, 0) in fin: pend = epi8(nxt); nxt += 1
            else: break
        if pend[0][1] > quota or not ready(pend[0]): break
        op = pend.pop(0); emit_epi(op); quota -= op[1]
        if op[0].startswith("ds_write") and str(op[3]) in A.bat: syncs.append(g)
stamp_issue()
if A.bst: e("s_memtime s[90:91]")
elif A.tst:
    ntst += 1; e(f"s_memtime s[{60+2*ntst}:{61+2*ntst}]")
rest = list(pend)
for ff in range(nxt, 8): rest += epi8(ff)
sys.stderr.write(f"min lead {minlead}, exposed ops {len(rest)}\n")
i = 0
syncs = [0 for _ in syncs]
while i < len(rest):
    op = rest[i]
    if syncs and i - syncs[0] >= A.se:
        syncs.pop(0); e("s_waitcnt lgkmcnt(0)"); e("s_barrier")
    if A.pk and op[4]:
        emit_epi(op, op[4]); i += 2
    else:
        emit_epi(op); i += 1
    if op[0].startswith("ds_write") and str(op[3]) in A.bat: syncs.append(i)
for _ in syncs:
    e("s_waitcnt lgkmcnt(0)"); e("s_barrier")
if DIAG:
    if A.tst:
        e("s_waitcnt lgkmcnt(0)")
        for i in range(1, 16 if A.bst else 12): e(f"s_mov_b32 s{SC0+i}, s{60+2*i}")
        for i in range(16 if A.bst else 12, 16): e(f"s_mov_b32 s{SC0+i}, 0")
        for i in range(1, 16): e(f"s_mov_b32 s{SR0+i}, 0")
        e(f"s_mov_b32 s{SR0}, s56")
    e("s_waitcnt lgkmcnt(0)"); stamp_commit(10)
    stamp_now(11)
    e("s_waitcnt vmcnt(0)")
    lab("L_diag")
    e("s_load_dwordx2 s[58:59], s[0:1], 32")
    e("s_waitcnt vmcnt(0) lgkmcnt(0)")
    stamp_now(12)
    e("s_barrier")
    e(f"v_mbcnt_lo_u32_b32 v0, -1, 0")
    e(f"v_mbcnt_hi_u32_b32 v0, -1, v0")
    e("s_mov_b32 s52, s58"); e("s_mov_b32 s53, s59"); e("s_mov_b32 s54, 0x100000"); e("s_mov_b32 s55, 0x20000")
    e("v_mov_b32 v1, 0")
    vals = [f"s{SC0+i}" for i in range(NST)] + [f"s{SR0+i}" for i in range(NST)]
    for i, s in enumerate(vals):
        e(f"v_mov_b32 v2, {s}")
        e(f"v_cmp_eq_u32 vcc, {i}, v0")
        e("s_nop 1")
        e("v_cndmask_b32 v1, v1, v2, vcc")
    e("s_lshl_b32 s56, s%d, 3" % (48 if A.ntx else 2))
    e("s_lshr_b32 s49, s3, 6")
    e("s_add_u32 s56, s56, s49")
    e("s_lshl_b32 s56, s56, 7")
    e("v_lshlrev_b32 v3, 2, v0")
    e("v_cmp_gt_u32 vcc, 32, v0")
    e("s_and_saveexec_b64 s[4:5], vcc")
    e("buffer_store_dword v1, v3, s[52:55], s56 offen")
    e("s_waitcnt vmcnt(0)")
if A.dly:
    mk, n = map(int, A.dly.split(','))
    e("s_and_b32 s4, s2, 7"); e("s_lshl_b32 s4, 1, s4"); e(f"s_and_b32 s4, s4, {mk}"); e("s_cbranch_scc0 L_end")
    e(f"s_mov_b32 s4, {n}"); lab("L_dly"); e("s_sub_u32 s4, s4, 1"); e("s_cbranch_scc0 L_dly")
lab("L_end")
e("s_endpgm")
if LATE is not None and A.lend:
    lab("L_late")
    sched_ops(LATE); sched_end()
if DIAG: ldiag()
lab("L_cend")
if A.pad: out.append(f".fill {A.pad//4}, 4, 0xbf810000")

footer = f"""
.section .rodata,"a"
.p2align 6
.amdhsa_kernel {NAME}_kernel
  .amdhsa_next_free_vgpr 256
  .amdhsa_next_free_sgpr 96
  .amdhsa_accum_offset 256
  .amdhsa_group_segment_fixed_size 0
  .amdhsa_kernarg_size 40
  .amdhsa_user_sgpr_count 2
  .amdhsa_user_sgpr_kernarg_segment_ptr 1
  .amdhsa_system_sgpr_workgroup_id_x 1
.end_amdhsa_kernel
"""

def labels(text):
    import subprocess, tempfile, os
    d = tempfile.mkdtemp()
    open(d + "/a.s", "w").write(text)
    subprocess.check_call(["clang", "-x", "assembler", "-target", "amdgcn-amd-amdhsa", "-mcpu=gfx950", "-c", d + "/a.s", "-o", d + "/a.o"])
    o = subprocess.check_output(["llvm-objdump", "-t", d + "/a.o"], text=True)
    r = {}
    for l in o.splitlines():
        p = l.split()
        if len(p) >= 5 and p[-1].startswith("L_"): r[p[-1]] = int(p[0], 16)
    return r
def addrs(text):
    import subprocess, tempfile
    d = tempfile.mkdtemp()
    open(d + "/a.s", "w").write(text)
    subprocess.check_call(["clang", "-x", "assembler", "-target", "amdgcn-amd-amdhsa", "-mcpu=gfx950", "-c", d + "/a.s", "-o", d + "/a.o"])
    o = subprocess.check_output(["llvm-objdump", "-t", d + "/a.o"], text=True)
    r = {}
    for l in o.splitlines():
        p = l.split()
        if len(p) >= 5 and (p[-1].startswith("Z_") or p[-1] == NAME + "_kernel"): r[p[-1]] = int(p[0], 16)
    return r
def visit(n):
    l = []
    if n: l.append("    s_mov_b64 vcc, -1")
    for r in range((n + 3) // 4):
        k = 4*r; m = min(4, n - k)
        if m == 4: l += ["    s_bitcmp1_b32 s3, 7", f"    s_cbranch_scc1 L_pv{r}"]
        if m == 3: l += ["    s_bitcmp1_b32 s3, 7", f"    s_cbranch_scc1 L_pad{k+2}"]
        if m >= 2: l += ["    s_bitcmp1_b32 s3, 6", f"    s_cbranch_scc1 L_pad{k+1}"]
        l += [f"    s_branch L_pad{k}"]
        if m == 4: l += [f"L_pv{r}:", "    s_bitcmp1_b32 s3, 6", f"    s_cbranch_scc1 L_pad{k+3}", f"    s_branch L_pad{k+2}"]
        l += [f"L_padret{r}:"]
    if n: l.append("    s_mov_b64 vcc, 0")
    return l
out[out.index("@CPAD")] = ""
def render(lines, fills):
    r = []
    for l in lines:
        if l.startswith("@VPAD"):
            n = fills.get(l, 0)
            if n: r.append(f".fill {n//4}, 4, 0xbf810000")
        else: r.append(l)
    return r
def layout(npad):
    iv = out.index("@PADVISIT")
    lines = out[:iv] + visit(npad) + out[iv+1:]
    fills = {}
    stub = lambda k: [f"L_pad{j}:" for j in range(k, npad)]
    for tau in range(A.nv if gm else 0):
        t = header + "\n".join(render(lines, fills) + stub(0)) + "\n" + footer
        lb = labels(t); k0 = addrs(t)[NAME + "_kernel"]
        a = lb[f"L_v{tau}"] - k0 + KOFF
        if tau == 0:
            al = min(A.vsz & -A.vsz, 4096); fills["@VPAD0"] = (-a) % al; v0 = a + fills["@VPAD0"]
        else:
            n = v0 + tau * A.vsz - a
            assert n >= 0, ("variant too big", tau, n)
            fills[f"@VPAD{tau}"] = n
    lines = render(lines, fills)
    im = lines.index("L_merge:")
    pre_, post = lines[:im+1], lines[im+1:]
    mo = [int(x) for x in A.mpad.split(',')] if (gm and A.mpad) else []
    k = 0; lastpage = None
    while True:
        ls = pre_ + [x for i, l in enumerate(post) for x in ([f"Z_{i}:", l] if l.startswith("    ") else [l])] + stub(k)
        ad = addrs(header + "\n".join(ls) + "\n" + footer)
        k0 = ad[NAME + "_kernel"]
        endi = post.index("L_diag:" if DIAG else "L_end:")
        rel = [(i, ad[f"Z_{i}"] - k0 + KOFF) for i in range(endi) if post[i].startswith("    ")]
        a0 = rel[0][1]
        tg = sorted([a0 + o for o in mo] + [pg * 4096 + A.padoff for pg in range(a0 // 4096 + 1, 64)])
        c = [i for i, a in rel if a >= tg[k]]
        if not c: break
        if k == npad: return None
        post[c[0]:c[0]] = [f"L_pad{k}:", f"    s_cbranch_vccnz L_padret{k//4}"]; k += 1
    return pre_ + post if k == npad else None
for npad in range(0, 9):
    r = layout(npad)
    if r: out = r; break
else: raise ValueError("pads")
text = header + "\n".join(out) + "\n" + footer
lb = labels(text)
k0 = addrs(text)[NAME + "_kernel"]
sys.stderr.write("npad %d " % npad + " ".join("%s %x" % (k, v - k0 + KOFF) for k, v in sorted(lb.items(), key=lambda kv: kv[1]) if k in ("L_consumer", "L_merge", "L_tail", "L_end", "L_late", "L_cend", "L_ldend") or k[:5] == "L_pad" or k[:3] == "L_v") + "\n")
assert not A.cwarm or lb["L_end"] - k0 <= 512 + 16384 * A.cw2 and (A.cw2 == 1 or lb["L_cend"] - k0 >= 512 + 16384 * (A.cw2 - 1))
sys.stdout.write(text)
```
